```python
import torch

def _softmax(x, axis=-1):
    return torch.softmax(x, dim=axis)

def _gelu(x):
    return torch.nn.functional.gelu(x, approximate='tanh')

def _silu(x):
    return torch.nn.functional.silu(x)

def _sigmoid(x):
    return torch.sigmoid(x)

def _layernorm(x, axis=-1, eps=1e-05):
    m = x.mean(dim=axis, keepdim=True)
    v = x.var(dim=axis, keepdim=True, unbiased=False)
    return (x - m) / torch.sqrt(v + eps)

def _scatter_add(tgt, idx, src, axis=0):
    return tgt.clone().index_add_(axis, idx, src)

def _segment_sum(src, seg, n):
    out = torch.zeros((n,) + src.shape[1:], dtype=src.dtype)
    return out.index_add_(0, seg, src)

def _pad(x, pw):
    flat = tuple((v for pair in reversed(pw) for v in pair))
    return torch.nn.functional.pad(x, flat)
kernel_name = 'adaLN_cond__gqa_block_cached__glu_gated_geglu__decode'

def setup_inputs():

    _w = lambda a: (lambda t: t.to(torch.bfloat16) if t.is_floating_point() else t)(torch.as_tensor(a))

    def _A_setup():
        B, Sq, D = (4, 1, 512)
        Hq, Hkv, Sk, Dh = (32, 8, 8192, 128)
        assert Hq % Hkv == 0, (Hq, Hkv)
        return {'x': _w((lambda *s: torch.randn(*s, dtype=torch.bfloat16) * 0.05)(B, Sq, D)), 'k_cache': _w((lambda *s: torch.randn(*s, dtype=torch.bfloat16) * 0.8)(B, Hkv, Sk, Dh)), 'v_cache': _w((lambda *s: torch.randn(*s, dtype=torch.bfloat16) * 3.2)(B, Hkv, Sk, Dh)), 'wq': _w((lambda *s: torch.randn(*s, dtype=torch.bfloat16) * 0.8)(D, Hq * Dh) * D ** (-0.5)), 'wo': _w((lambda *s: torch.randn(*s, dtype=torch.bfloat16) * 3.2)(Hq * Dh, D) * (Hq * Dh) ** (-0.5))}
    _A_in = _A_setup()

    def _B_setup():
        B, S, Dm, Df = (4, 1, 512, 1792)
        return {'x': _w((lambda *s: torch.randn(*s, dtype=torch.bfloat16) * 0.05)(B, S, Dm)), 'w_gate': _w((lambda *s: torch.randn(*s, dtype=torch.bfloat16) * 3.2)(Dm, Df) * Dm ** (-0.5)), 'w_up': _w((lambda *s: torch.randn(*s, dtype=torch.bfloat16) * 3.2)(Dm, Df) * Dm ** (-0.5)), 'w_down': _w((lambda *s: torch.randn(*s, dtype=torch.bfloat16) * 3.2)(Df, Dm) * Df ** (-0.5))}
    _B_in = _B_setup()
    return {'A_x': _A_in['x'], 'A_k_cache': _A_in['k_cache'], 'A_v_cache': _A_in['v_cache'], 'A_wq': _A_in['wq'], 'A_wo': _A_in['wo'], 'B_x': _B_in['x'], 'B_w_gate': _B_in['w_gate'], 'B_w_up': _B_in['w_up'], 'B_w_down': _B_in['w_down'], 'c': _w((lambda *s: torch.randn(*s, dtype=torch.bfloat16) * 0.1)(4, 512) * 8.0), 'w_mod': _w((lambda *s: torch.randn(*s, dtype=torch.bfloat16) * 0.1)(512, 6 * 512) * 512 ** (-0.5) * 8.0)}

def reference(A_x, A_k_cache, A_v_cache, A_wq, A_wo, B_x, B_w_gate, B_w_up, B_w_down, c, w_mod):

    def _A_ref(x, k_cache, v_cache, wq, wo):
        B, Sq, D = x.shape
        Hq, Dh = (32, 128)
        Hkv = k_cache.shape[1]
        rep = Hq // Hkv
        q = (lambda x, *d: x.permute(*d))((x @ wq).reshape(B, Sq, Hq, Dh), 0, 2, 1, 3)
        k = (lambda x, n, axis: torch.repeat_interleave(x, n, dim=axis))(k_cache, rep, axis=1)
        v = (lambda x, n, axis: torch.repeat_interleave(x, n, dim=axis))(v_cache, rep, axis=1)
        scores = torch.einsum('bhqd,bhkd->bhqk', q, k) * Dh ** (-0.5)
        p = _softmax(scores, axis=-1)
        o = torch.einsum('bhqk,bhkd->bhqd', p, v)
        return (lambda x, *d: x.permute(*d))(o, 0, 2, 1, 3).reshape(B, Sq, Hq * Dh) @ wo

    def _B_ref(x, w_gate, w_up, w_down):
        g = torch.einsum('bsd,df->bsf', x, w_gate)
        u = torch.einsum('bsd,df->bsf', x, w_up)
        h = _gelu(g) * u
        return torch.einsum('bsf,fd->bsd', h, w_down)
    x = A_x
    mod = (_silu(c) @ w_mod).reshape(c.shape[0], 6, 1, -1)
    sa, ca, ga, sb, cb, gb = (mod[:, 0].clone(), mod[:, 1].clone(), mod[:, 2].clone(), mod[:, 3].clone(), mod[:, 4].clone(), mod[:, 5].clone())
    h = _layernorm(x, axis=-1) * (1 + ca) + sa
    x = x + ga * _A_ref(h, A_k_cache, A_v_cache, A_wq, A_wo)
    h = _layernorm(x, axis=-1) * (1 + cb) + sb
    x = x + gb * _B_ref(h, B_w_gate, B_w_up, B_w_down)
    return x
```

```python
KNAME = "adaLN_cond__gqa_block_cached__glu_gated_geglu__decode_kernel"
HEADER = """; Kernarg layout (112 bytes, ptrs only, base s[0:1]):
;   0 A_x  8 A_k_cache  16 A_v_cache  24 A_wq  32 A_wo  40 B_x  48 B_w_gate  56 B_w_up
"""
class Asm:
    def __init__(self):
        self.lines = []
        self.uid = 0
    def __call__(self, s=""):
        for l in s.split("\n"):
            l = l.strip()
            if not l: continue
            if l.endswith(":") or l.startswith("."):
                self.lines.append(l)
            else:
                self.lines.append("    " + l)
    def label(self, base="L"):
        self.uid += 1
        return f"{base}_{self.uid}"
    def c(self, s):
        self.lines.append("    ; " + s)
    def text(self):
        return "\n".join(self.lines) + "\n"

def wrap(body, grid, block, lds, vgpr=256, accum=None, sgpr=102, name=KNAME, header=HEADER):
    if accum is None:
        accum = min(256, (vgpr + 3)//4*4)
    return (header + f"; @launch grid=({grid},1,1) block=({block},1,1) lds={lds}\n"
        '.amdgcn_target "amdgcn-amd-amdhsa--gfx950"\n.text\n'
        f".globl {name}\n.p2align 8\n.type {name},@function\n{name}:\n" + body +
        '.section .rodata,"a"\n.p2align 6\n'
        f".amdhsa_kernel {name}\n  .amdhsa_next_free_vgpr {vgpr}\n  .amdhsa_next_free_sgpr {sgpr}\n"
        f"  .amdhsa_accum_offset {accum}\n  .amdhsa_group_segment_fixed_size 0\n  .amdhsa_kernarg_size 112\n"
        "  .amdhsa_user_sgpr_count 2\n  .amdhsa_user_sgpr_kernarg_segment_ptr 1\n"
        "  .amdhsa_system_sgpr_workgroup_id_x 1\n"
        ".end_amdhsa_kernel\n")

import re
_TRANS = ("v_exp_f32","v_log_f32","v_rcp_f32","v_rsq_f32","v_sqrt_f32","v_sin_f32","v_cos_f32","v_rcp_iflag_f32")
def _regs(tok):
    tok = tok.strip()
    neg = tok.lstrip("-")
    m = re.fullmatch(r"abs\((.*)\)", neg)
    if m: neg = m.group(1)
    neg = neg.strip("|")
    m = re.fullmatch(r"([vsa])\[(\d+):(\d+)\]", neg)
    if m: return [(m.group(1), i) for i in range(int(m.group(2)), int(m.group(3))+1)]
    m = re.fullmatch(r"([vsa])(\d+)", neg)
    if m: return [(m.group(1), int(m.group(2)))]
    if neg == "vcc": return [("s",106),("s",107)]
    if neg == "vcc_lo": return [("s",106)]
    if neg == "vcc_hi": return [("s",107)]
    if neg == "exec": return [("s",126),("s",127)]
    if neg == "m0": return [("s",124)]
    return []
class Ins:
    def __init__(self, line):
        self.line = line
        t = line.split(";")[0].strip()
        self.op = t.split()[0]
        rest = t[len(self.op):].strip()
        parts = [p.strip() for p in rest.split(",")] if rest else []
        ops = []
        self.mods = ""
        for i,p in enumerate(parts):
            w = p.split()
            if not w: continue
            if p.startswith("quad_perm") or "[" in w[0] and w[0].count("[") != w[0].count("]"):
                self.mods += " " + p; continue
            ops.append(w[0]); self.mods += " " + " ".join(w[1:])
        self.ops = ops
        op = self.op
        self.is_mfma = op.startswith("v_mfma")
        self.is_valu = op.startswith("v_") and not self.is_mfma
        self.is_vmem = op.startswith(("buffer_","global_","flat_"))
        self.is_ds = op.startswith("ds_")
        self.is_salu = op.startswith("s_")
        self.is_dpp = op.endswith("_dpp")
        self.is_trans = op.replace("_e32","").replace("_e64","") in _TRANS
        self.is_dot = op.startswith("v_dot")
        self.is_perml = op.startswith("v_permlane")
        self.is_rdl = op.startswith(("v_readlane","v_readfirstlane"))
        self.lds_dma = self.is_vmem and " lds" in (" " + t + " ") and "load" in op
        W=[]; R=[]
        o = [_regs(x) for x in ops]
        flat = lambda l: [r for x in l for r in x]
        if self.is_mfma:
            W = o[0]; R = flat(o[1:]); self.C = o[3]; self.AB = o[1]+o[2]
        elif self.is_valu:
            if op.startswith("v_cmp"):
                W = o[0]; R = flat(o[1:])
            elif self.is_perml:
                W = o[0]+o[1]; R = o[0]+o[1]
            elif op.startswith(("v_add_co","v_sub_co","v_addc_co","v_subb_co")):
                W = o[0]+o[1]; R = flat(o[2:])
            else:
                W = o[0]; R = flat(o[1:])
                if op.startswith(("v_fmac","v_dot2c","v_mac")) or self.is_dpp or "_sdwa" in op: R = R + o[0]
                if op.startswith("v_cndmask") and len(ops) == 3: R = R + _regs("vcc")
        elif self.is_vmem:
            if self.lds_dma or "store" in op or ("atomic" in op and " sc0" not in t):
                R = flat(o)
                if self.lds_dma: R = R + _regs("m0")
            else:
                W = o[0]; R = flat(o[1:])
                if "atomic" in op: R = R + o[0]
        elif self.is_ds:
            if op.startswith(("ds_read","ds_bpermute","ds_permute","ds_swizzle")) or "_rtn" in op:
                W = o[0]; R = flat(o[1:])
            else:
                R = flat(o)
        elif self.is_salu:
            if op.startswith(("s_cmp","s_bitcmp","s_cbranch","s_branch","s_waitcnt","s_nop","s_barrier","s_sleep","s_endpgm","s_setprio")):
                R = flat(o)
            else:
                W = o[0] if o else []; R = flat(o[1:])
                if "saveexec" in op: W = W + _regs("exec"); R = R + _regs("exec")
        self.W = set(W); self.R = set(R)
        self.wide_store = self.is_vmem and "store" in op and op.endswith(("x3","x4"))
        if self.wide_store:
            self.data = set(o[0] if op.startswith("buffer") else o[1])
        self.states = 1
        if op == "s_nop": self.states = int(ops[0]) + 1

def need(p, c):
    n = 0
    pv = {r for r in p.W if r[0] in "va"}; ps = {r for r in p.W if r[0] == "s"}
    if p.is_valu:
        if pv & c.R:
            if c.is_dpp or c.is_perml or c.is_mfma: n = max(n, 2)
            if c.is_rdl: n = max(n, 1)
            if p.is_trans: n = max(n, 1)
        if p.is_dot and ((pv & c.R) or (pv & c.W)):
            same = c.op == p.op and (pv & c.W) and not (pv & {r for x in c.ops[1:] for r in _regs(x)})
            if not same: n = max(n, 3)
        if ps & c.R:
            if c.is_valu or c.is_mfma: n = max(n, 4 if c.is_rdl else 2)
            if c.is_vmem: n = max(n, 5)
            if c.is_salu: n = max(n, 1)
    if p.is_mfma:
        passes = 8 if "32x32" in p.op else 4
        lat = {4: 8, 8: 12}[passes]
        if c.is_mfma:
            if pv & set(c.AB): n = max(n, lat)
            if pv & set(c.C):
                if set(c.C) != pv or c.op != p.op: n = max(n, lat-2)
            elif pv & c.W: n = max(n, lat-2)
        elif (pv & c.R) or (pv & c.W): n = max(n, lat)
        if c.is_valu and set(p.C) & c.W: n = max(n, {4: 3, 8: 7}[passes])
    if p.is_salu and ("s",124) in p.W and c.lds_dma: n = max(n, 1)
    if p.wide_store and (c.is_valu or c.is_mfma) and (p.data & c.W): n = max(n, 2)
    if p.wide_store and (c.is_vmem or c.is_ds) and (p.data & c.W): n = max(n, 1)
    return n

def _req(hist, c):
    req = 0; dist = 0
    for p in reversed(hist):
        if dist >= 20: break
        k = need(p, c) - dist
        if k > req: req = k
        dist += p.states
    return req

def fix_hazards(text):
    out = []
    hists = [[]]
    saved = {}
    seen = {}
    prog = []
    back = []
    added = 0
    for line in text.split("\n"):
        s = line.strip()
        t = s.split(";")[0].strip()
        if t.endswith(":"):
            lab = t[:-1]
            seen[lab] = len(prog)
            hists = hists + saved.pop(lab, [])
            if not hists: hists = [[]]
            out.append(line); continue
        if not t or t.startswith("."):
            out.append(line); continue
        c = Ins(s)
        req = max([_req(h, c) for h in hists] or [0])
        if req > 0:
            out.append(f"    s_nop {req-1}")
            nop = Ins(f"s_nop {req-1}")
            for h in hists: h.append(nop)
            prog.append(nop); added += 1
        out.append(line); prog.append(c)
        for h in hists: h.append(c)
        hists = [h[-24:] for h in hists]
        uniq = {}
        for h in hists: uniq[tuple(id(x) for x in h)] = h
        hists = list(uniq.values())
        if c.op.startswith(("s_cbranch","s_branch")):
            lab = c.ops[0]
            if lab in seen: back.append((lab, [list(h) for h in hists]))
            else: saved.setdefault(lab, []).extend([list(h) for h in hists])
        if c.op in ("s_branch","s_endpgm"):
            hists = []
    for lab, hs in back:
        for h in hs:
            h = list(h); dist = 0
            for c in prog[seen[lab]:]:
                if _req(h, c) > 0:
                    raise RuntimeError(f"hazard across back edge to {lab}: {c.line}")
                h.append(c); dist += c.states
                if dist > 20 or c.op in ("s_branch","s_endpgm"): break
    assert not saved, saved.keys()
    return "\n".join(out), added
```

```python
import sys, math
from asmgen import Asm, wrap, fix_hazards, KNAME

MB_MOD = 0x00000
MB_Q   = 0x08000
MB_ML  = 0x10000
MB_X   = 0x18000
MB_O   = 0x40000
MB_D   = 0x80000
WS_SPAN = 0x100000
STAMPS = 0x100000
L_SLAB = 0
L_DOWN = 65536
L_ACT  = 98304
L_RED  = L_ACT + 4352
L_ML   = L_RED + 8*2304
L_CNT  = L_ML + 256
L_HH   = L_CNT + 64
L_END  = L_HH + 256
ACT_STRIDE = 1088
R_FREE, R_Q, R_O, R_M, R_FD = 0, 1, 2, 3, 4
ROLE = [
    [(R_Q,0),(R_Q,4),(R_O,0),(R_O,4),(R_M,0),(R_FD,0),(R_M,4),(R_FREE,0)],
    [(R_Q,1),(R_Q,5),(R_O,1),(R_O,5),(R_M,1),(R_FD,1),(R_FD,4),(R_FREE,0)],
    [(R_Q,2),(R_Q,6),(R_O,2),(R_O,6),(R_M,2),(R_FD,2),(R_FD,5),(R_FREE,0)],
    [(R_Q,3),(R_Q,7),(R_O,3),(R_O,7),(R_M,3),(R_FD,3),(R_M,5),(R_FD,6)],
]
TILES = [
    [64,64,63,63,63,60,64,71],
    [64,64,64,64,64,60,60,72],
    [64,64,64,64,64,60,60,72],
    [65,65,65,65,65,61,65,61],
]
NT = 9
LOG2E = 1.4426950408889634
def f2u(x):
    import struct
    return struct.unpack("<I", struct.pack("<f", x))[0]

sX, sJ, sB, sS, sW, sROLE, sRI, sT0, sNT, sLOC, sFLAG, sSPIN = (f"s{i}" for i in range(60, 72))
sRB, sRS = "s74", "s75"
sPLO, sPHI, sC2, sB7, sB8, sSO = "s80", "s81", "s82", "s83", "s84", "s85"
sDLO, sDHI = "s96", "s97"
SRD_K, SRD_V, SRD_WS, SRD_DBG, SRD_R1, SRD_R2, SRD_T = (f"s[{i}:{i+3}]" for i in range(32, 60, 4))
vKO, vVO = "v1", "v2"
vM, vL, vF = "v9", "v10", "v11"
Q0 = 12
D0 = 16
VS = 32
KB = 96
SP = 240
def vr(a, n=1):
    return f"v{a}" if n == 1 else f"v[{a}:{a+n-1}]"
def Kreg(i): return KB + 16*i
def Dreg(i): return D0 if i == 0 else Kreg(i-1)
def Vreg(i): return VS + 16*i if i < 4 else Kreg(i-4)
def Preg(i): return Kreg(8) + 2*i if i < 8 else Q0
ACC = Kreg(5)
PT = Kreg(7)
FULL = "row_mask:0xf bank_mask:0xf"


class Gen:
    def __init__(self, kvf="nt", wf="nt", depth=5, stamps=False, force_slow=False, tq=4, tf=5, spin=40000, tiles=None):
        self.a = Asm()
        self.kvf, self.wf, self.D = kvf, wf, depth
        self.stamps, self.force_slow, self.tq, self.tf, self.spin = stamps, force_slow, tq, tf, spin
        self.tiles = tiles or TILES
        for row in self.tiles:
            assert sum(row) == 512 and max(row) <= 72 and min(row) >= 57
        self.cold = []
        self.vm = []

    def srd(self, srd, base, nbytes, off=None):
        i = int(srd[2:srd.index(":")])
        a = self.a
        if off is None:
            a(f"s_mov_b32 s{i}, s{base}\n s_mov_b32 s{i+1}, s{base+1}")
        else:
            a(f"s_add_u32 s{i}, s{base}, {off}\n s_addc_u32 s{i+1}, s{base+1}, 0")
        a(f"s_mov_b32 s{i+2}, {nbytes}\n s_mov_b32 s{i+3}, 0x00020000")

    def stamp(self, k):
        if not self.stamps: return
        self.a(f"s_memrealtime s[98:99]\n s_waitcnt lgkmcnt(0)\n v_writelane_b32 v255, s98, {k}")

    def stamp_flush(self):
        if not self.stamps: return
        a = self.a
        a(f"""
        s_lshl_b32 s72, s2, 3
        s_add_u32 s72, s72, {sW}
        s_lshl_b32 s72, s72, 6
        s_add_u32 s72, s72, {STAMPS}
        s_add_u32 s56, s30, s72
        s_addc_u32 s57, s31, 0
        s_mov_b32 s58, 64
        s_mov_b32 s59, 0x00020000
        s_mov_b64 exec, -1
        v_lshlrev_b32 v3, 2, v0
        buffer_store_dword v255, v3, {SRD_T}, 0 offen
        """)

    def issued(self, tag):
        self.vm.append(tag)
    def after(self, tag):
        idx = max(i for i, t in enumerate(self.vm) if t == tag)
        return len(self.vm) - 1 - idx
    def throttle(self):
        self.a(f"s_waitcnt vmcnt({self.D-1})")

    def sentinel_max(self, dst, regs):
        a = self.a
        regs = list(regs)
        if len(regs) == 1:
            return f"v{regs[0]}"
        if len(regs) == 2:
            a(f"v_max_u32 {dst}, v{regs[0]}, v{regs[1]}"); return dst
        a(f"v_max3_u32 {dst}, v{regs[0]}, v{regs[1]}, v{regs[2]}")
        r = regs[3:]
        while len(r) >= 2:
            a(f"v_max3_u32 {dst}, v{r[0]}, v{r[1]}, {dst}"); r = r[2:]
        if r: a(f"v_max_u32 {dst}, v{r[0]}, {dst}")
        return dst

    def poll_check(self, loads, regs, tmp, name):
        a = self.a
        lab = a.label("L_" + name)
        m = self.sentinel_max(tmp, regs)
        a(f"v_cmp_eq_u32 vcc, -1, {m}\n s_cbranch_vccnz {lab}_spin\n {lab}_ok:")
        b = Asm(); sv = self.a; self.a = b
        b(f"{lab}_spin:\n s_mov_b32 {sSPIN}, 0\n {lab}_loop:")
        for l in loads: b(l)
        b("s_waitcnt vmcnt(0)")
        m = self.sentinel_max(tmp, regs)
        b(f"""v_cmp_eq_u32 vcc, -1, {m}
        s_cbranch_vccz {lab}_ok
        s_add_u32 {sSPIN}, {sSPIN}, 1
        s_cmp_lt_u32 {sSPIN}, {self.spin}
        s_cbranch_scc1 {lab}_loop
        s_branch {lab}_ok""")
        self.a = sv
        self.cold.append(b.text())

    def store_local(self, instr):
        a = self.a
        lab = a.label("L_st")
        a(f"s_cmp_eq_u32 {sLOC}, 0\n s_cbranch_scc1 {lab}_slow\n {instr}\n {lab}_done:")
        self.cold.append(f"{lab}_slow:\n    {instr} sc1\n    s_branch {lab}_done\n")

    def allreduce64(self, v, t, op="v_add_f32"):
        a = self.a
        a(f"{op}_dpp {v}, {v}, {v} quad_perm:[1,0,3,2] {FULL}")
        a(f"{op}_dpp {v}, {v}, {v} quad_perm:[2,3,0,1] {FULL}")
        a(f"{op}_dpp {v}, {v}, {v} row_ror:4 {FULL}")
        a(f"{op}_dpp {v}, {v}, {v} row_ror:8 {FULL}")
        self.rows_reduce(v, t, op)
    def rows_reduce(self, v, t, op):
        a = self.a
        a(f"v_mov_b32 {t}, {v}\n v_permlane16_swap_b32 {v}, {t}\n {op} {v}, {v}, {t}")
        a(f"v_mov_b32 {t}, {v}\n v_permlane32_swap_b32 {v}, {t}\n {op} {v}, {v}, {t}")

    def unpack8(self, src, dst):
        a = self.a
        for r in range(4):
            a(f"v_lshlrev_b32 v{dst+2*r}, 16, v{src+r}")
            a(f"v_and_b32 v{dst+2*r+1}, 0xffff0000, v{src+r}")

    def layernorm8(self, x, t0, t1):
        a = self.a
        a(f"v_add_f32 v{t0}, v{x}, v{x+1}\n v_add_f32 v{t1}, v{x+2}, v{x+3}")
        a(f"v_add_f32 v{t0}, v{t0}, v{x+4}\n v_add_f32 v{t1}, v{t1}, v{x+5}")
        a(f"v_add_f32 v{t0}, v{t0}, v{x+6}\n v_add_f32 v{t1}, v{t1}, v{x+7}")
        a(f"v_add_f32 v{t0}, v{t0}, v{t1}")
        self.allreduce64(f"v{t0}", f"v{t1}")
        a(f"v_mul_f32 v{t0}, {hex(f2u(1/512))}, v{t0}")
        for r in range(8): a(f"v_sub_f32 v{x+r}, v{x+r}, v{t0}")
        a(f"v_mul_f32 v{t0}, v{x}, v{x}\n v_mul_f32 v{t1}, v{x+1}, v{x+1}")
        for r in range(2, 8): a(f"v_fmac_f32 v{t0 if r%2==0 else t1}, v{x+r}, v{x+r}")
        a(f"v_add_f32 v{t0}, v{t0}, v{t1}")
        self.allreduce64(f"v{t0}", f"v{t1}")
        a(f"v_mov_b32 v{t1}, {hex(f2u(1e-5))}\n v_fmac_f32 v{t1}, {hex(f2u(1/512))}, v{t0}\n v_rsq_f32 v{t0}, v{t1}")
        for r in range(8): a(f"v_mul_f32 v{x+r}, v{x+r}, v{t0}")

    def minibar(self, target):
        a = self.a
        lab = a.label("L_mb")
        a(f"""
        s_waitcnt lgkmcnt(0)
        v_mov_b32 v3, {L_CNT+4}
        v_mov_b32 v4, 1
        s_mov_b64 exec, 1
        ds_add_u32 v3, v4
        s_mov_b64 exec, -1
        {lab}:
        ds_read_b32 v4, v3
        s_waitcnt lgkmcnt(0)
        v_readfirstlane_b32 s72, v4
        s_cmp_ge_u32 s72, {target}
        s_cbranch_scc0 {lab}
        """)

    def slab_addr128(self, dst, ct_is_wave=True):
        a = self.a
        a(f"""
        v_lshrrev_b32 v3, 4, v0              ; g
        v_bfe_u32 v4, v0, 2, 2               ; rr
        v_lshl_add_u32 v5, v3, 3, v4         ; 8g+rr
        v_lshlrev_b32 v5, 7, v5
        v_and_b32 v3, 1, v3
        v_lshlrev_b32 v3, 1, v3
        v_lshrrev_b32 v4, 1, v4
        v_or_b32 v3, v3, v4                  ; phi
        """)
        if ct_is_wave: a(f"v_xor_b32 v3, {sW}, v3")
        a(f"""
        v_lshl_add_u32 v5, v3, 5, v5
        v_and_b32 v4, 3, v0
        v_lshl_add_u32 {dst}, v4, 3, v5
        """)

    def dma_slab128(self, nwaves, rowstride, throttle):
        a = self.a
        per = 64 // nwaves
        a(f"""
        v_lshrrev_b32 v3, 3, v0
        v_mul_u32_u24 v4, {rowstride}, v3
        v_and_b32 v5, 2, v3
        v_and_b32 v3, 7, v0
        v_xor_b32 v3, v3, v5
        v_lshl_add_u32 v6, v3, 4, v4
        v_xor_b32 v3, 4, v3
        v_lshl_add_u32 v7, v3, 4, v4
        s_mul_i32 s87, {sW}, {per*8*rowstride}
        s_mul_i32 s86, {sW}, {per*1024}
        """)
        for i in range(per):
            if throttle: self.throttle()
            a(f"s_add_u32 m0, s86, {L_SLAB + i*1024}")
            a(f"buffer_load_dwordx4 {'v6' if i%2==0 else 'v7'}, {SRD_R1}, s87 offen {self.wf} lds")
            if i != per-1: a(f"s_add_u32 s87, s87, {8*rowstride}")

    def gemv_small(self):
        a = self.a
        self.slab_addr128("v52")
        a(f"""
        v_and_b32 v3, 3, v0
        v_mul_u32_u24 v4, {ACT_STRIDE}, v3
        v_lshrrev_b32 v5, 4, v0
        v_lshl_add_u32 v53, v5, 4, v4
        v_add_u32 v53, {L_ACT}, v53
        v_mul_lo_u32 v54, v3, {sRS}
        v_lshl_add_u32 v54, v5, 3, v54
        s_lshl_b32 s72, {sW}, 5
        v_add_u32 v54, s72, v54
        """)
        for ch in range(4):
            for k in range(4):
                t = 4*ch + k
                a(f"ds_read_b64_tr_b16 v[{56+4*k}:{57+4*k}], v52 offset:{L_SLAB + t*4096}")
                a(f"ds_read_b64_tr_b16 v[{58+4*k}:{59+4*k}], v52 offset:{L_SLAB + t*4096 + 512}")
                a(f"ds_read_b128 v[{72+4*k}:{75+4*k}], v53 offset:{t*64}")
            for k in range(4):
                a(f"s_waitcnt lgkmcnt({3*(3-k)})")
                c = "0" if (ch == 0 and k == 0) else "v[44:47]"
                a(f"v_mfma_f32_16x16x32_bf16 v[44:47], v[{56+4*k}:{59+4*k}], v[{72+4*k}:{75+4*k}], {c}")
        a("""
        v_cvt_pk_bf16_f32 v48, v44, v45
        v_cvt_pk_bf16_f32 v49, v46, v47
        v_min_u32 v48, -2, v48
        v_min_u32 v49, -2, v49
        s_mov_b32 exec_lo, 0x000f000f
        s_mov_b32 exec_hi, 0x000f000f
        """)

    def prologue(self):
        a = self.a
        a(f"""
        s_cmp_ge_u32 s2, 256
        s_cbranch_scc1 L_exit
        s_load_dwordx16 s[4:19], s[0:1], 0
        s_load_dwordx8 s[20:27], s[0:1], 64
        s_load_dwordx4 s[28:31], s[0:1], 96
        s_getpc_b64 s[72:73]
        L_pc:
        v_lshlrev_b32 v3, 6, v0
        v_cmp_gt_u32 vcc, L_code_end-L_pc, v3
        s_and_saveexec_b64 s[88:89], vcc
        s_cbranch_execz L_nopf
        global_load_dword v{SP}, v3, s[72:73]
        L_nopf:
        s_mov_b64 exec, s[88:89]
        v_lshrrev_b32 v1, 6, v0
        v_and_b32 v0, 63, v0
        s_and_b32 {sX}, s2, 7
        v_readfirstlane_b32 {sW}, v1
        s_lshr_b32 {sJ}, s2, 3
        s_and_b32 {sB}, {sJ}, 3
        s_lshr_b32 {sS}, {sJ}, 2
        v_mov_b32 v3, {L_CNT}
        v_mov_b32 v4, 0
        v_mov_b32 v5, 0
        ds_write_b64 v3, v[4:5]
        """)
        if self.stamps:
            a("v_mov_b32 v255, 0")
        def pack(f):
            out = []
            for b in range(4):
                v = 0
                for s in range(8):
                    x = f(b, s); assert 0 <= x < 16, (b, s, x)
                    v |= x << (4*s)
                out.append(v)
            return out
        t0 = lambda b, s: sum(self.tiles[b][:s])
        tabs = [pack(lambda b, s: ROLE[b][s][0]), pack(lambda b, s: ROLE[b][s][1]),
                pack(lambda b, s: t0(b, s) - 64*s + 8), pack(lambda b, s: self.tiles[b][s] - 57)]
        regs = ["s76", "s77", "s78", "s79"]
        for r, t in zip(regs, tabs): a(f"s_mov_b32 {r}, {hex(t[0])}")
        for b in range(1, 4):
            a(f"s_cmp_eq_u32 {sB}, {b}")
            for r, t in zip(regs, tabs): a(f"s_cselect_b32 {r}, {hex(t[b])}, {r}")
        a(f"s_lshl_b32 s72, {sS}, 2")
        for r in regs: a(f"s_lshr_b32 {r}, {r}, s72\n s_and_b32 {r}, {r}, 15")
        a(f"""
        s_mov_b32 {sROLE}, s76
        s_mov_b32 {sRI}, s77
        s_lshl_b32 s72, {sS}, 6
        s_add_u32 s72, s72, s78
        s_sub_u32 {sT0}, s72, 8
        s_add_u32 {sNT}, s79, 57
        v_lshlrev_b32 {vVO}, 4, v0
        v_and_b32 v3, 3, v0
        v_lshrrev_b32 v4, 4, v0
        v_lshlrev_b32 v5, 4, v3
        v_lshl_add_u32 v5, v4, 6, v5
        v_bfe_u32 v3, v0, 2, 2
        v_lshl_add_u32 {vKO}, v3, 8, v5
        s_lshl_b32 s72, {sB}, 3
        s_add_u32 s72, s72, {sX}
        s_lshl_b32 s76, s72, 21
        s_add_u32 s77, {sT0}, {sW}
        s_lshl_b32 s77, s77, 12
        s_add_u32 s76, s76, s77
        s_sub_u32 s77, {sNT}, {sW}
        s_lshl_b32 s34, s77, 12
        s_mov_b32 s38, s34
        s_mov_b32 s35, 0x00020000
        s_mov_b32 s39, 0x00020000
        s_cmp_gt_u32 s77, 56
        s_cselect_b32 {sB7}, 0, 0xff800000
        s_cmp_gt_u32 s77, 64
        s_cselect_b32 {sB8}, 0, 0xff800000
        s_mov_b32 {sPLO}, 0x05040100
        s_mov_b32 {sPHI}, 0x07060302
        s_mov_b32 {sC2}, {hex(f2u(LOG2E/math.sqrt(128.0)))}
        s_mov_b32 {sDLO}, 0x00003f80
        s_mov_b32 {sDHI}, 0x3f800000
        s_mov_b32 {sLOC}, 0
        s_getreg_b32 {sFLAG}, hwreg(HW_REG_XCC_ID, 0, 4)
        s_or_b32 {sFLAG}, {sFLAG}, 0x80
        s_lshl_b32 s72, {sRI}, 3
        s_add_u32 s72, s72, {sX}
        s_lshl_b32 s72, s72, 7
        s_add_u32 s72, s72, {MB_MOD}          ; M
        s_lshl_b32 s73, {sX}, 3
        s_add_u32 s73, s73, {sRI}
        s_lshl_b32 s73, s73, 7
        s_add_u32 s73, s73, {MB_Q}            ; Q
        s_lshl_b32 s77, {sX}, 12
        s_lshl_b32 s78, {sRI}, 7
        s_add_u32 s77, s77, s78
        s_add_u32 s77, s77, {MB_X}            ; O
        s_mul_i32 s78, {sX}, 7
        s_add_u32 s78, s78, {sRI}
        s_lshl_b32 s78, s78, 13
        s_add_u32 s78, s78, {MB_D}            ; FD
        s_mov_b32 {sRB}, s72
        s_mov_b32 {sRS}, 6144
        s_cmp_eq_u32 {sROLE}, {R_Q}
        s_cselect_b32 {sRB}, s73, {sRB}
        s_cselect_b32 {sRS}, 8192, {sRS}
        s_cmp_eq_u32 {sROLE}, {R_O}
        s_cselect_b32 {sRB}, s77, {sRB}
        s_cselect_b32 {sRS}, 1024, {sRS}
        s_cmp_eq_u32 {sROLE}, {R_FD}
        s_cselect_b32 {sRB}, s78, {sRB}
        s_waitcnt lgkmcnt(0)
        s_add_u32 s32, s6, s76
        s_addc_u32 s33, s7, 0
        s_add_u32 s36, s8, s76
        s_addc_u32 s37, s9, 0
        """)
        self.srd(SRD_WS, 30, WS_SPAN)
        self.srd(SRD_DBG, 28, 256)
        a("s_barrier")
        self.stamp(0)

    def phase_a(self):
        a = self.a
        a(f"""
        s_cmp_eq_u32 {sW}, 7
        s_cbranch_scc0 L_noclear
        v_mov_b32 v32, -1
        v_mov_b32 v33, -1
        v_mov_b32 v34, -1
        v_mov_b32 v35, -1
        s_lshl_b32 s72, {sX}, 2
        s_add_u32 s72, s72, {sB}
        s_lshl_b32 s72, s72, 3
        s_add_u32 s72, s72, {sS}
        s_lshl_b32 s72, s72, 10
        s_add_u32 s72, s72, {MB_O}
        buffer_store_dwordx4 v[32:35], {vVO}, {SRD_WS}, s72 offen sc1
        s_lshl_b32 s72, {sB}, 3
        s_add_u32 s72, s72, {sX}
        s_lshl_b32 s72, s72, 3
        s_add_u32 s72, s72, {sS}
        s_lshl_b32 s72, s72, 5
        s_add_u32 s72, s72, {MB_ML}
        s_mov_b64 exec, 3
        buffer_store_dwordx4 v[32:35], {vVO}, {SRD_WS}, s72 offen sc1
        s_mov_b64 exec, -1
        s_cmp_eq_u32 {sROLE}, {R_FREE}
        s_cbranch_scc1 L_noclear
        s_cmp_eq_u32 {sROLE}, {R_FD}
        s_cbranch_scc1 L_clear_fd
        v_lshrrev_b32 v3, 3, v0
        v_mul_lo_u32 v3, v3, {sRS}
        v_and_b32 v4, 7, v0
        v_lshl_add_u32 v3, v4, 4, v3
        s_mov_b32 exec_hi, 0
        buffer_store_dwordx4 v[32:35], v3, {SRD_WS}, {sRB} offen sc1
        s_mov_b64 exec, -1
        s_branch L_noclear
        L_clear_fd:
        s_add_u32 s72, {sRB}, 4096
        """)
        for i in range(8):
            a(f"buffer_store_dwordx4 v[32:35], {vVO}, {SRD_WS}, {sRB if i < 4 else 's72'} offen offset:{(i%4)*1024} sc1")
        a("L_noclear:")
        a(f"""
        s_cmp_eq_u32 {sROLE}, {R_FREE}
        s_cbranch_scc1 L_a_done
        s_cmp_eq_u32 {sROLE}, {R_FD}
        s_cbranch_scc1 L_a_fd
        s_cmp_eq_u32 {sROLE}, {R_O}
        s_cbranch_scc1 L_a_o
        s_cmp_ge_u32 {sW}, 4
        s_cbranch_scc1 L_a_done
        s_cmp_eq_u32 {sROLE}, {R_Q}
        s_cbranch_scc1 L_a_q
        """)
        self.srd(SRD_T, 22, 4096)
        a(f"""
        s_lshl_b32 s72, {sW}, 10
        buffer_load_dwordx4 v[32:35], {vVO}, {SRD_T}, s72 offen
        s_sub_u32 s72, {sRB}, {MB_MOD}
        s_add_u32 s48, s24, s72
        s_addc_u32 s49, s25, 0
        s_sub_u32 s50, {512*6144}, s72
        s_mov_b32 s51, 0x00020000
        """)
        self.dma_slab128(4, 6144, False)
        a("s_branch L_a_done\n L_a_q:")
        self.srd(SRD_T, 4, 4096)
        a(f"""
        s_lshl_b32 s72, {sW}, 10
        buffer_load_dwordx4 v[32:35], {vVO}, {SRD_T}, s72 offen
        s_sub_u32 s72, {sRB}, {MB_Q}
        s_add_u32 s48, s10, s72
        s_addc_u32 s49, s11, 0
        s_sub_u32 s50, {512*8192}, s72
        s_mov_b32 s51, 0x00020000
        """)
        self.dma_slab128(4, 8192, False)
        a("s_branch L_a_done\n L_a_o:")
        a(f"""
        s_lshl_b32 s72, {sX}, 19
        s_lshl_b32 s73, {sRI}, 7
        s_add_u32 s72, s72, s73
        s_add_u32 s48, s12, s72
        s_addc_u32 s49, s13, 0
        s_sub_u32 s50, {4096*1024}, s72
        s_mov_b32 s51, 0x00020000
        """)
        self.dma_slab128(8, 1024, True)
        a("s_branch L_a_done\n L_a_fd:")
        a(f"""
        s_mul_i32 s72, {sX}, 448
        s_lshl_b32 s73, {sRI}, 6
        s_add_u32 s72, s72, s73
        s_add_u32 s48, s16, s72
        s_addc_u32 s49, s17, 0
        s_sub_u32 s50, {512*3584}, s72
        s_mov_b32 s51, 0x00020000
        s_add_u32 s52, s18, s72
        s_addc_u32 s53, s19, 0
        s_mov_b32 s54, s50
        s_mov_b32 s55, 0x00020000
        v_lshrrev_b32 v3, 2, v0
        v_mul_u32_u24 v4, 3584, v3
        v_lshrrev_b32 v3, 3, v3
        v_and_b32 v5, 3, v0
        v_xor_b32 v5, v5, v3
        v_lshl_add_u32 v6, v5, 4, v4
        v_xor_b32 v5, 2, v5
        v_lshl_add_u32 v7, v5, 4, v4
        s_mul_i32 s87, {sW}, {64*3584}
        s_lshl_b32 s86, {sW}, 12
        """)
        for i in range(4):
            self.throttle()
            a(f"s_add_u32 m0, s86, {L_SLAB + i*1024}")
            a(f"buffer_load_dwordx4 v6, {SRD_R1}, s87 offen {self.wf} lds")
            self.throttle()
            a(f"s_add_u32 m0, s86, {L_SLAB + 32768 + i*1024}")
            a(f"buffer_load_dwordx4 v7, {SRD_R2}, s87 offen {self.wf} lds")
            if i != 3: a(f"s_add_u32 s87, s87, {16*3584}")
        a(f"""
        s_sub_u32 s72, {sRB}, {MB_D}
        s_lshl_b32 s72, s72, 2               ; p*32 rows*1024
        s_lshl_b32 s73, {sW}, 12
        s_add_u32 s72, s72, s73
        s_add_u32 s56, s20, s72
        s_addc_u32 s57, s21, 0
        s_mov_b32 s58, 4096
        s_mov_b32 s59, 0x00020000
        """)
        for i in range(4):
            swz = ((i & 1) << 3) | (i >> 1)
            a(f"v_xor_b32 v3, {swz}, v0\n v_lshlrev_b32 v3, 4, v3\n v_add_u32 v3, {i*1024}, v3")
            self.throttle()
            a(f"s_add_u32 m0, s86, {L_DOWN + i*1024}")
            a(f"buffer_load_dwordx4 v3, {SRD_T}, 0 offen {self.wf} lds")
        a("L_a_done:")

    def load_tile(self, kind, i, throttle=True):
        a = self.a
        base = Kreg(i) if kind == "K" else Vreg(i)
        a(f"s_mov_b32 {sSO}, {i*32768}")
        for t in range(4):
            self.load_one(kind, i, t, throttle, setso=False)
    def load_one(self, kind, i, t, throttle=True, setso=True):
        a = self.a
        base = Kreg(i) if kind == "K" else Vreg(i)
        if setso: a(f"s_mov_b32 {sSO}, {i*32768}")
        if throttle: self.throttle()
        a(f"buffer_load_dwordx4 {vr(base+4*t,4)}, {vKO if kind=='K' else vVO}, {SRD_K if kind=='K' else SRD_V}, {sSO} offen offset:{t*1024} {self.kvf}")
        self.issued(f"{kind}{i}")

    def flags_load(self):
        return f"buffer_load_dword v{SP}, v{SP+1}, {SRD_DBG}, 0 offen sc1"
    def flags_check(self):
        a = self.a
        lab = a.label("L_fl")
        a(f"""
        v_and_b32 v{SP+2}, 0x80808080, v{SP}
        v_cmp_ne_u32 vcc, 0x80808080, v{SP+2}
        s_cbranch_vccnz {lab}_spin
        {lab}_ok:
        s_mul_i32 s72, {sFLAG}, 0x01010101
        v_cmp_eq_u32 vcc, s72, v{SP}
        s_lshl_b32 s73, {sX}, 3
        s_lshr_b64 s[90:91], vcc, s73
        s_and_b32 s90, s90, 0xff
        s_cmp_eq_u32 s90, 0xff
        s_cselect_b32 {sLOC}, {0 if self.force_slow else 1}, 0
        """)
        self.cold.append(f"""{lab}_spin:
    s_mov_b32 {sSPIN}, 0
{lab}_loop:
    {self.flags_load()}
    s_waitcnt vmcnt(0)
    v_and_b32 v{SP+2}, 0x80808080, v{SP}
    v_cmp_ne_u32 vcc, 0x80808080, v{SP+2}
    s_cbranch_vccz {lab}_ok
    s_add_u32 {sSPIN}, {sSPIN}, 1
    s_cmp_lt_u32 {sSPIN}, {self.spin}
    s_cbranch_scc1 {lab}_loop
    s_branch {lab}_ok
""")

    def hook_after_tile0(self):
        a = self.a
        a(f"""
        s_cmp_eq_u32 {sW}, 7
        s_cbranch_scc0 L_h0_n7
        s_waitcnt vmcnt(4)
        s_lshl_b32 s72, {sX}, 5
        s_add_u32 s72, s72, {sJ}
        v_mov_b32 v3, s72
        v_mov_b32 v4, {sFLAG}
        s_mov_b64 exec, 1
        buffer_store_byte v4, v3, {SRD_DBG}, 0 offen sc1
        s_mov_b64 exec, -1
        s_branch L_h0_done
        L_h0_n7:
        s_cmp_ge_u32 {sW}, 4
        s_cbranch_scc1 L_h0_done
        s_cmp_eq_u32 {sROLE}, {R_Q}
        s_cbranch_scc1 L_h0_q
        s_cmp_eq_u32 {sROLE}, {R_M}
        s_cbranch_scc0 L_h0_done
        """)
        a("s_waitcnt vmcnt(20)")
        self.unpack8(32, 36)
        for r in range(8): a(f"v_mul_f32 v{44+r}, {hex(f2u(-LOG2E))}, v{36+r}")
        for r in range(8): a(f"v_exp_f32 v{44+r}, v{44+r}")
        for r in range(8): a(f"v_add_f32 v{44+r}, 1.0, v{44+r}")
        for r in range(8): a(f"v_rcp_f32 v{44+r}, v{44+r}")
        for r in range(8): a(f"v_mul_f32 v{36+r}, v{36+r}, v{44+r}")
        for r in range(4): a(f"v_cvt_pk_bf16_f32 v{32+r}, v{36+2*r}, v{37+2*r}")
        a(f"""
        s_mul_i32 s72, {sW}, {ACT_STRIDE}
        s_add_u32 s72, s72, {L_ACT}
        v_add_u32 v3, s72, {vVO}
        ds_write_b128 v3, v[32:35]
        s_waitcnt vmcnt(4)
        """)
        self.minibar(4)
        self.stamp(1)
        self.gemv_small()
        a(f"buffer_store_dwordx2 v[48:49], v54, {SRD_WS}, {sRB} offen sc1\n s_mov_b64 exec, -1")
        self.stamp(2)
        a("s_branch L_h0_done\n L_h0_q:")
        a("s_waitcnt vmcnt(20)")
        self.unpack8(32, 36)
        self.layernorm8(36, 44, 45)
        a("L_h0_done:")

    def hook_q(self):
        a = self.a
        a(f"""
        s_cmp_ge_u32 {sW}, 4
        s_cbranch_scc1 L_hq_done
        s_cmp_eq_u32 {sROLE}, {R_Q}
        s_cbranch_scc0 L_hq_done
        v_lshlrev_b32 v{SP+1}, 2, v0
        {self.flags_load()}
        s_waitcnt vmcnt(0)
        """)
        self.flags_check()
        self.stamp(1)
        loads = [f"buffer_load_dwordx4 v[56:59], {vVO}, {SRD_WS}, s73 offen sc1",
                 f"buffer_load_dwordx4 v[60:63], {vVO}, {SRD_WS}, s73 offen offset:1024 sc1"]
        a(f"s_mul_i32 s73, {sW}, 6144\n s_add_u32 s73, s73, {MB_MOD}")
        for l in loads: a(l)
        a("s_waitcnt vmcnt(0)")
        self.poll_check(loads, range(56, 64), "v3", "pm")
        self.stamp(2)
        self.unpack8(56, 64)
        self.unpack8(60, 72)
        for r in range(8): a(f"v_fma_f32 v{72+r}, v{36+r}, v{72+r}, v{36+r}")
        for r in range(8): a(f"v_add_f32 v{72+r}, v{72+r}, v{64+r}")
        for r in range(4): a(f"v_cvt_pk_bf16_f32 v{32+r}, v{72+2*r}, v{73+2*r}")
        a(f"""
        s_mul_i32 s72, {sW}, {ACT_STRIDE}
        s_add_u32 s72, s72, {L_ACT}
        v_add_u32 v3, s72, {vVO}
        ds_write_b128 v3, v[32:35]
        """)
        self.minibar(4)
        self.gemv_small()
        self.store_local(f"buffer_store_dwordx2 v[48:49], v54, {SRD_WS}, {sRB} offen")
        a("s_mov_b64 exec, -1")
        self.stamp(3)
        a("L_hq_done:")

    def k_stream(self):
        a = self.a
        for i in range(NT):
            self.load_tile("K", i)
            if i == 0: self.hook_after_tile0()
            if i == self.tq: self.hook_q()
            if i == self.tf:
                a(f"v_lshlrev_b32 v{SP+1}, 2, v0\n {self.flags_load()}"); self.issued("FL")
            if i == self.tf + 1:
                a(f"s_waitcnt vmcnt({self.after('FL')})")
                self.flags_check()
        self.stamp(4)

    def qk(self):
        a = self.a
        def mf(i):
            for t in range(4):
                a(f"v_mfma_f32_16x16x32_bf16 {vr(Dreg(i)+4*t,4)}, {vr(Kreg(i)+4*t,4)}, {vr(Q0,4)}, 0")
        def red(i):
            for s in range(1, 4):
                for t in range(4):
                    d = Dreg(i) + 4*t
                    a(f"v_add_f32_dpp v{d}, v{d+s}, v{d} row_shl:{4*s} {FULL}")
            if i >= 7:
                for t in range(4):
                    d = Dreg(i) + 4*t
                    a(f"v_add_f32 v{d}, {sB7 if i == 7 else sB8}, v{d}")
        mf(0)
        for i in range(1, NT):
            mf(i); red(i-1)
        red(NT-1)
        S = [Dreg(i) + 4*t for i in range(NT) for t in range(4)]
        a(f"v_max3_f32 {vM}, v{S[0]}, v{S[1]}, v{S[2]}\n v_max3_f32 v3, v{S[3]}, v{S[4]}, v{S[5]}")
        for k in range(6, 36, 2):
            d = vM if (k//2) % 2 else "v3"
            a(f"v_max3_f32 {d}, v{S[k]}, v{S[k+1]}, {d}")
        a(f"v_max_f32 {vM}, {vM}, v3")
        self.rows_reduce(vM, "v3", "v_max_f32")
        a(f"v_mul_f32 {vM}, {sC2}, {vM}")
        for k in range(36): a(f"v_fma_f32 v{S[k]}, v{S[k]}, {sC2}, -{vM}")
        for k in range(36): a(f"v_exp_f32 v{S[k]}, v{S[k]}")
        a(f"v_add_f32 {vL}, v{S[0]}, v{S[1]}\n v_add_f32 v3, v{S[2]}, v{S[3]}")
        for k in range(4, 36): a(f"v_add_f32 {vL if k%2==0 else 'v3'}, {vL if k%2==0 else 'v3'}, v{S[k]}")
        a(f"v_add_f32 {vL}, {vL}, v3")
        for i in range(NT):
            a(f"v_cvt_pk_bf16_f32 v{Preg(i)}, v{S[4*i]}, v{S[4*i+1]}")
            a(f"v_cvt_pk_bf16_f32 v{Preg(i)+1}, v{S[4*i+2]}, v{S[4*i+3]}")
        self.rows_reduce(vL, "v3", "v_add_f32")

    def ml_publish(self):
        a = self.a
        a(f"""
        s_lshl_b32 s72, {sW}, 5
        s_add_u32 s72, s72, {L_ML}
        v_lshl_add_u32 v3, v0, 2, s72
        s_mov_b64 exec, 15
        ds_write2_b32 v3, {vM}, {vL} offset0:0 offset1:4
        v_mov_b32 v4, {L_CNT}
        v_mov_b32 v5, 1
        s_waitcnt lgkmcnt(0)
        s_mov_b64 exec, 1
        ds_add_rtn_u32 v6, v4, v5
        s_mov_b64 exec, -1
        v_and_b32 v4, 3, v0
        v_lshl_add_u32 v5, v4, 2, s72
        ds_read_b32 {vM}, v5
        s_waitcnt lgkmcnt(0)
        v_readfirstlane_b32 s73, v6
        s_cmp_eq_u32 s73, 7
        s_cbranch_scc0 L_ml_done
        v_bfe_u32 v5, v0, 2, 3
        v_lshlrev_b32 v5, 5, v5
        v_lshl_add_u32 v5, v4, 2, v5
        v_add_u32 v5, {L_ML}, v5
        ds_read2_b32 v[6:7], v5 offset0:0 offset1:4
        s_waitcnt lgkmcnt(0)
        """)
        self.ml_merge("v6", "v7", "v8", "v5")
        a(f"""
        v_min_u32 v8, -2, v8
        v_min_u32 v7, -2, v7
        s_lshl_b32 s72, {sB}, 3
        s_add_u32 s72, s72, {sX}
        s_lshl_b32 s72, s72, 3
        s_add_u32 s72, s72, {sS}
        s_lshl_b32 s72, s72, 5
        s_add_u32 s72, s72, {MB_ML}
        v_lshlrev_b32 v4, 2, v4
        s_mov_b64 exec, 15
        """)
        self.store_local(f"buffer_store_dword v8, v4, {SRD_WS}, s72 offen")
        self.store_local(f"buffer_store_dword v7, v4, {SRD_WS}, s72 offen offset:16")
        a("s_mov_b64 exec, -1\n L_ml_done:")

    def ml_merge(self, m, l, M, t):
        a = self.a
        a(f"v_max_f32_dpp {M}, {m}, {m} row_ror:4 {FULL}")
        a(f"v_max_f32_dpp {M}, {M}, {M} row_ror:8 {FULL}")
        a(f"v_mov_b32 {t}, {M}\n v_permlane16_swap_b32 {M}, {t}\n v_max_f32 {M}, {M}, {t}")
        a(f"v_sub_f32 {m}, {m}, {M}\n v_exp_f32 {m}, {m}\n v_mul_f32 {l}, {l}, {m}")
        a(f"v_add_f32_dpp {l}, {l}, {l} row_ror:4 {FULL}")
        a(f"v_add_f32_dpp {l}, {l}, {l} row_ror:8 {FULL}")
        a(f"v_mov_b32 {t}, {l}\n v_permlane16_swap_b32 {l}, {t}\n v_add_f32 {l}, {l}, {t}")

    def pv(self, i):
        a = self.a
        v = Vreg(i)
        for r in range(4):
            for hi in range(2):
                e = 2*r + hi
                sel = sPHI if hi else sPLO
                a(f"v_perm_b32 v{PT+2*e}, v{v+4+r}, v{v+r}, {sel}")
                a(f"v_perm_b32 v{PT+2*e+1}, v{v+12+r}, v{v+8+r}, {sel}")
        for e in range(8):
            c = "0" if i == 0 else vr(ACC+4*e, 4)
            a(f"v_mfma_f32_16x16x16_bf16 {vr(ACC+4*e,4)}, {vr(PT+2*e,2)}, {vr(Preg(i),2)}, {c}")

    def attention(self):
        a = self.a
        D = self.D
        qload = f"buffer_load_dwordx4 {vr(Q0,4)}, v3, {SRD_WS}, s73 offen sc1"
        self.load_tile("V", 0)
        a(f"""
        v_and_b32 v3, 3, v0
        v_lshlrev_b32 v3, 8, v3
        v_lshrrev_b32 v4, 4, v0
        v_lshl_add_u32 v3, v4, 6, v3
        v_bfe_u32 v4, v0, 2, 2
        v_lshl_add_u32 v3, v4, 4, v3
        s_lshl_b32 s73, {sB}, 13
        s_lshl_b32 s72, {sX}, 10
        s_add_u32 s73, s73, s72
        s_add_u32 s73, s73, {MB_Q}
        {qload}
        """)
        self.issued("q")
        self.load_tile("V", 1)
        a(f"s_waitcnt vmcnt({self.after('q')})")
        self.poll_check([qload], range(Q0, Q0+4), "v4", "pq")
        self.stamp(5)
        self.load_tile("V", 2, throttle=False)
        self.load_tile("V", 3, throttle=False)
        self.qk()
        self.stamp(6)
        self.ml_publish()
        seq = [(i, t) for i in range(4, NT) for t in range(4)]
        mlloads = [f"buffer_load_dword v{SP+4}, v{SP+3}, {SRD_WS}, s77 offen sc1",
                   f"buffer_load_dword v{SP+5}, v{SP+3}, {SRD_WS}, s77 offen offset:16 sc1"]
        done = 0
        for n, (i, t) in enumerate(seq):
            self.load_one("V", i, t, throttle=True, setso=(t == 0))
            if (i, t) == (7, 0):
                a(f"""
                v_bfe_u32 v3, v0, 2, 3
                v_lshlrev_b32 v3, 5, v3
                v_and_b32 v4, 3, v0
                v_lshl_add_u32 v{SP+3}, v4, 2, v3
                s_lshl_b32 s77, {sB}, 3
                s_add_u32 s77, s77, {sX}
                s_lshl_b32 s77, s77, 8
                s_add_u32 s77, s77, {MB_ML}
                """)
                for l in mlloads: a(l); self.issued("ML")
            if n >= D-1 and done < 4:
                a(f"s_waitcnt vmcnt({self.after(f'V{done}')})")
                self.pv(done); done += 1
            elif done >= 4 and done < 7 and self.after(f"V{done}") >= D - 1 and (i > done):
                a(f"s_waitcnt vmcnt({self.after(f'V{done}')})")
                self.pv(done); done += 1
        while done < 7:
            a(f"s_waitcnt vmcnt({self.after(f'V{done}')})")
            self.pv(done); done += 1
        a(f"s_waitcnt vmcnt({self.after('ML')})")
        self.poll_check(mlloads, [SP+4, SP+5], "v3", "pml")
        self.ml_merge(f"v{SP+4}", f"v{SP+5}", f"v{SP+6}", "v3")
        a(f"""
        v_sub_f32 {vF}, {vM}, v{SP+6}
        v_exp_f32 {vF}, {vF}
        v_rcp_f32 v{SP+5}, v{SP+5}
        v_mul_f32 {vF}, {vF}, v{SP+5}
        v_and_b32 v3, 3, v0
        v_mul_u32_u24 v3, 288, v3
        v_lshrrev_b32 v4, 2, v0
        v_lshl_add_u32 v3, v4, 4, v3
        s_mul_i32 s72, {sW}, 2304
        s_add_u32 s72, s72, {L_RED}
        v_add_u32 v5, s72, v3
        v_bfe_u32 v3, v0, 1, 1
        v_mul_u32_u24 v3, 1152, v3
        v_lshl_add_u32 v3, v4, 4, v3
        v_and_b32 v4, 1, v0
        v_lshl_add_u32 v3, v4, 3, v3
        s_mul_i32 s72, {sW}, 288
        s_add_u32 s72, s72, {L_RED}
        v_add_u32 v6, s72, v3
        v_lshlrev_b32 v7, 2, v0
        s_lshl_b32 s77, {sX}, 2
        s_add_u32 s77, s77, {sB}
        s_lshl_b32 s77, s77, 3
        s_add_u32 s77, s77, {sS}
        s_lshl_b32 s77, s77, 10
        s_add_u32 s77, s77, {MB_O}
        s_lshl_b32 s72, {sW}, 8
        s_add_u32 s77, s77, s72
        s_cmp_lg_u32 {sB7}, 0
        s_cbranch_scc1 L_pv_done
        s_waitcnt vmcnt({self.after('V7')})
        """)
        self.pv(7)
        a(f"s_cmp_lg_u32 {sB8}, 0\n s_cbranch_scc1 L_pv_done\n s_waitcnt vmcnt(0)")
        self.pv(8)
        a("L_pv_done:")
        self.stamp(7)
        for e in range(8): a(f"v_mul_f32 v{D0+e}, v{ACC+4*e}, {vF}")
        for be in range(1, 4):
            for e in range(8):
                a(f"v_mul_f32_dpp v{D0+e}, v{ACC+4*e+be}, {vF} row_shr:{4*be} row_mask:0xf bank_mask:{hex(1<<be)}")
        a(f"""
        ds_write_b128 v5, {vr(D0,4)}
        ds_write_b128 v5, {vr(D0+4,4)} offset:1152
        s_waitcnt vmcnt(0) lgkmcnt(0)
        s_barrier
        s_cmp_ge_u32 {sW}, 4
        s_cbranch_scc1 L_pub_done
        """)
        for s in range(8): a(f"ds_read_b64 v[{32+2*s}:{33+2*s}], v6 offset:{s*2304}")
        a("s_waitcnt lgkmcnt(6)\n v_add_f32 v32, v32, v34\n v_add_f32 v33, v33, v35")
        for s in range(2, 8):
            a(f"s_waitcnt lgkmcnt({7-s})\n v_add_f32 v32, v32, v{32+2*s}\n v_add_f32 v33, v33, v{33+2*s}")
        a("v_cvt_pk_bf16_f32 v32, v32, v33\n v_min_u32 v32, -2, v32")
        self.store_local(f"buffer_store_dword v32, v7, {SRD_WS}, s77 offen")
        a("L_pub_done:")
        self.stamp(8)

    def role_o(self):
        a = self.a
        a("L_role_o:")
        a(f"""
        v_and_b32 v3, 3, v0
        v_lshlrev_b32 v3, 13, v3
        v_bfe_u32 v4, v0, 2, 2
        v_lshl_add_u32 v3, v4, 10, v3
        v_lshrrev_b32 v4, 4, v0
        v_lshl_add_u32 v8, v4, 4, v3
        s_lshl_b32 s76, {sX}, 15
        s_lshl_b32 s72, {sW}, 7
        s_add_u32 s76, s76, s72
        s_add_u32 s76, s76, {MB_O}
        s_add_u32 s77, s76, 4096
        """)
        loads = [f"buffer_load_dwordx4 v[{32+8*u+4*t}:{35+8*u+4*t}], v8, {SRD_WS}, {'s76' if u == 0 else 's77'} offen offset:{64*t} sc1"
                 for u in range(2) for t in range(2)]
        for l in loads: a(l)
        self.slab_addr128("v9", ct_is_wave=False)
        a(f"s_lshl_b32 s72, {sW}, 13\n v_add_u32 v9, s72, v9")
        for ct in range(4):
            if ct: a(f"v_xor_b32 v10, {32*ct}, v9")
            ad = "v10" if ct else "v9"
            for t in range(2):
                for h in range(2):
                    r = 64 + 8*ct + 4*t + 2*h
                    a(f"ds_read_b64_tr_b16 v[{r}:{r+1}], {ad} offset:{L_SLAB + t*4096 + h*512}")
        a(f"""
        s_lshl_b32 s72, {sW}, 10
        s_add_u32 s72, s72, {L_DOWN}
        v_add_u32 v5, s72, {vVO}
        v_and_b32 v3, 3, v0                  ; g'
        v_lshlrev_b32 v3, 8, v3
        v_bfe_u32 v4, v0, 2, 2               ; tile
        v_lshl_add_u32 v3, v4, 6, v3
        v_lshrrev_b32 v4, 4, v0              ; batch
        v_lshl_add_u32 v6, v4, 4, v3
        v_add_u32 v6, {L_DOWN}, v6
        v_and_b32 v3, 15, v0
        v_lshlrev_b32 v3, 3, v3
        v_lshl_add_u32 v7, v4, 10, v3
        s_waitcnt vmcnt(0)
        """)
        self.poll_check(loads, range(32, 48), "v3", "po")
        self.stamp(9)
        a("s_waitcnt lgkmcnt(0)")
        for k, (u, t) in enumerate([(u, t) for u in range(2) for t in range(2)]):
            for ct in range(4):
                c = "0" if k == 0 else vr(48+4*ct, 4)
                a(f"v_mfma_f32_16x16x32_bf16 {vr(48+4*ct,4)}, {vr(64+8*ct+4*t,4)}, {vr(32+8*u+4*t,4)}, {c}")
        for c in range(2):
            for r in range(4):
                a(f"v_add_f32_dpp v{32+4*c+r}, v{48+4*c+r}, v{48+4*c+r} row_ror:8 row_mask:0xf bank_mask:0x3")
        for c in range(2):
            for r in range(4):
                a(f"v_add_f32_dpp v{32+4*c+r}, v{56+4*c+r}, v{56+4*c+r} row_ror:8 row_mask:0xf bank_mask:0xc")
        for r in range(4):
            a(f"v_add_f32_dpp v{40+r}, v{32+r}, v{32+r} row_shl:4 row_mask:0xf bank_mask:0x5")
        for r in range(4):
            a(f"v_add_f32_dpp v{40+r}, v{36+r}, v{36+r} row_shr:4 row_mask:0xf bank_mask:0xa")
        a(f"""
        ds_write_b128 v5, v[40:43]
        s_waitcnt lgkmcnt(0)
        s_barrier
        s_cmp_eq_u32 {sW}, 0
        s_cbranch_scc0 L_fin
        """)
        for s in range(8): a(f"ds_read_b128 v[{32+4*s}:{35+4*s}], v6 offset:{s*1024}")
        for s in range(1, 8):
            a(f"s_waitcnt lgkmcnt({7-s})")
            for r in range(4): a(f"v_add_f32 v{32+r}, v{32+r}, v{32+4*s+r}")
        a(f"""
        v_cvt_pk_bf16_f32 v32, v32, v33
        v_cvt_pk_bf16_f32 v33, v34, v35
        v_min_u32 v32, -2, v32
        v_min_u32 v33, -2, v33
        buffer_store_dwordx2 v[32:33], v7, {SRD_WS}, {sRB} offen sc1
        """)
        self.stamp(10)
        a("s_branch L_fin")

    def role_fd(self):
        a = self.a
        a("L_role_fd:")
        a(f"""
        v_lshrrev_b32 v3, 4, v0              ; g
        v_bfe_u32 v4, v0, 2, 2               ; rr
        v_lshl_add_u32 v5, v3, 3, v4
        v_lshlrev_b32 v5, 10, v5             ; row*1024
        v_and_b32 v3, 1, v4
        v_lshlrev_b32 v3, 3, v3
        v_lshrrev_b32 v4, 1, v4
        v_or_b32 v3, v3, v4                  ; swizzle
        v_and_b32 v4, 3, v0
        v_lshlrev_b32 v4, 1, v4
        s_lshl_b32 s72, {sW}, 3
        v_add_u32 v4, s72, v4                ; unit 8w+2c'
        v_xor_b32 v6, v4, v3
        v_lshl_add_u32 v6, v6, 4, v5
        v_add_u32 v6, {L_DOWN}, v6
        v_xor_b32 v7, 16, v6
        """)
        for ct in range(4):
            for h in range(2):
                r = 96 + 4*ct + 2*h
                a(f"ds_read_b64_tr_b16 v[{r}:{r+1}], {'v6' if ct < 2 else 'v7'} offset:{h*4096 + (ct&1)*8}")
        a(f"""
        v_bfe_u32 v3, v0, 2, 2
        v_lshrrev_b32 v4, 4, v0
        v_lshlrev_b32 v5, 6, v3
        v_lshl_add_u32 v5, v4, 4, v5
        v_add_u32 v12, {L_HH}, v5
        v_lshlrev_b32 v5, 11, v3
        v_lshl_add_u32 v5, v4, 6, v5
        v_and_b32 v3, 3, v0
        v_lshl_add_u32 v5, v3, 4, v5
        s_lshl_b32 s72, {sW}, 8
        v_add_u32 v13, s72, v5
        s_mov_b32 s90, 0x22222222
        s_mov_b32 s91, 0x22222222
        s_mov_b32 s92, 0x44444444
        s_mov_b32 s93, 0x44444444
        s_mov_b32 s94, 0x88888888
        s_mov_b32 s95, 0x88888888
        s_cmp_ge_u32 {sW}, 4
        s_cbranch_scc1 L_fd_bar1
        """)
        self.srd(SRD_T, 4, 4096)
        a(f"""
        s_lshl_b32 s72, {sW}, 10
        buffer_load_dwordx4 v[32:35], {vVO}, {SRD_T}, s72 offen
        s_mul_i32 s73, {sW}, 6144
        s_add_u32 s73, s73, {MB_MOD + 2048}
        """)
        loads = [f"buffer_load_dwordx4 v[{36+4*k}:{39+4*k}], {vVO}, {SRD_WS}, s73 offen offset:{1024*k} sc1" for k in range(3)]
        for l in loads: a(l)
        a(f"""
        v_lshrrev_b32 v3, 4, v0              ; g
        v_bfe_u32 v4, v0, 2, 2               ; rr
        v_lshl_add_u32 v5, v3, 3, v4
        v_lshlrev_b32 v5, 6, v5              ; row*64
        v_bfe_u32 v4, v0, 1, 1               ; image
        v_lshl_add_u32 v5, v4, 15, v5
        v_and_b32 v3, 1, v3
        v_lshl_or_b32 v3, v4, 1, v3
        v_xor_b32 v3, {sW}, v3
        v_lshl_add_u32 v5, v3, 4, v5
        v_and_b32 v3, 1, v0
        v_lshl_add_u32 v6, v3, 3, v5
        """)
        for t in range(16):
            for h in range(2):
                r = 112 + 4*t + 2*h
                a(f"ds_read_b64_tr_b16 v[{r}:{r+1}], v6 offset:{L_SLAB + t*2048 + h*256}")
        a(f"""
        v_and_b32 v3, 3, v0
        v_mul_u32_u24 v4, {ACT_STRIDE}, v3
        v_lshrrev_b32 v5, 4, v0
        v_lshl_add_u32 v14, v5, 4, v4
        v_add_u32 v14, {L_ACT}, v14
        s_mul_i32 s72, {sW}, {ACT_STRIDE}
        s_add_u32 s72, s72, {L_ACT}
        v_add_u32 v15, s72, {vVO}
        v_lshlrev_b32 v3, 6, v3
        v_and_b32 v5, 1, v5
        v_lshl_add_u32 v3, v5, 3, v3
        v_bfe_u32 v4, v0, 2, 2
        v_lshl_add_u32 v3, v4, 1, v3
        s_lshl_b32 s72, {sW}, 4
        s_add_u32 s72, s72, {L_HH}
        v_add_u32 v9, s72, v3
        s_waitcnt vmcnt(0)
        """)
        self.poll_check(loads, range(36, 48), "v3", "pmod")
        self.unpack8(32, 48)
        self.unpack8(36, 56)
        self.unpack8(40, 64)
        self.unpack8(44, 72)
        for r in range(8): a(f"v_add_f32 v{72+r}, 1.0, v{72+r}")
        a(f"s_lshl_b32 s76, {sW}, 10\n s_add_u32 s76, s76, {MB_X}")
        xl = []
        for k in range(8):
            xl.append(f"s_add_u32 s77, s76, {4096*k}")
            xl.append(f"buffer_load_dwordx4 v[{176+4*k}:{179+4*k}], {vVO}, {SRD_WS}, s77 offen sc1")
        for l in xl: a(l)
        a("s_waitcnt vmcnt(0)")
        self.poll_check(xl, range(176, 208), "v3", "px")
        self.stamp(9)
        for r in range(8): a(f"v_mov_b32 v{80+r}, 0")
        for k in range(8):
            for r in range(4):
                a(f"v_dot2c_f32_bf16 v{80+2*r}, {sDLO}, v{176+4*k+r}")
                a(f"v_dot2c_f32_bf16 v{81+2*r}, {sDHI}, v{176+4*k+r}")
        for r in range(8): a(f"v_fmac_f32 v{48+r}, v{56+r}, v{80+r}")
        self.layernorm8(48, 80, 81)
        for r in range(8): a(f"v_fma_f32 v{48+r}, v{48+r}, v{72+r}, v{64+r}")
        for r in range(4): a(f"v_cvt_pk_bf16_f32 v{32+r}, v{48+2*r}, v{49+2*r}")
        a("ds_write_b128 v15, v[32:35]")
        a("L_fd_bar1:\n s_waitcnt lgkmcnt(0)\n s_barrier")
        a(f"s_cmp_ge_u32 {sW}, 4\n s_cbranch_scc1 L_fd_bar2")
        for t in range(16): a(f"ds_read_b128 v[{176+4*t}:{179+4*t}], v14 offset:{64*t}")
        for t in range(16):
            a(f"s_waitcnt lgkmcnt({min(15, 15-t)})")
            c = "0" if t == 0 else "v[32:35]"
            a(f"v_mfma_f32_16x16x32_bf16 v[32:35], {vr(112+4*t,4)}, {vr(176+4*t,4)}, {c}")
        k1 = -2.0*math.sqrt(2.0/math.pi)*LOG2E
        a(f"""
        v_mov_b32 v36, v32
        v_mov_b32_dpp v36, v33 quad_perm:[0,1,2,3] row_mask:0xf bank_mask:0x2
        v_mov_b32_dpp v36, v34 quad_perm:[0,1,2,3] row_mask:0xf bank_mask:0x4
        v_mov_b32_dpp v36, v35 quad_perm:[0,1,2,3] row_mask:0xf bank_mask:0x8
        v_mov_b32 v37, v36
        v_permlane32_swap_b32 v36, v37
        v_mul_f32 v38, v36, v36
        v_mov_b32 v39, {hex(f2u(k1))}
        v_fmac_f32 v39, {hex(f2u(k1*0.044715))}, v38
        v_mul_f32 v39, v39, v36
        v_exp_f32 v39, v39
        v_mul_f32 v37, v37, v36
        v_add_f32 v39, 1.0, v39
        v_rcp_f32 v39, v39
        v_mul_f32 v37, v37, v39
        v_cvt_pk_bf16_f32 v37, v37, v37
        ds_write_b16 v9, v37
        L_fd_bar2:
        s_waitcnt lgkmcnt(0)
        s_barrier
        ds_read_b128 v[32:35], v12
        s_waitcnt lgkmcnt(0)
        """)
        for ct in range(4):
            a(f"v_mfma_f32_16x16x32_bf16 {vr(48+4*ct,4)}, {vr(96+4*ct,4)}, v[32:35], 0")
        for ct in range(1, 4):
            for r in range(4):
                a(f"v_cndmask_b32 v{48+r}, v{48+r}, v{48+4*ct+r}, s[{88+2*ct}:{89+2*ct}]")
        for r in range(4): a(f"v_min_u32 v{48+r}, -2, v{48+r}")
        a(f"buffer_store_dwordx4 v[48:51], v13, {SRD_WS}, {sRB} offen sc1")
        self.stamp(10)
        a("s_branch L_fin")

    def role_r(self):
        a = self.a
        a("L_role_r:")
        a(f"""
        s_cmp_ge_u32 {sW}, 4
        s_cbranch_scc1 L_fin
        s_lshl_b32 s76, {sX}, 3
        s_add_u32 s76, s76, {sRI}            ; rho
        s_lshl_b32 s76, s76, 3
        v_and_b32 v3, 1, v0
        v_lshlrev_b32 v3, 2, v3
        v_lshrrev_b32 v4, 5, v0
        v_lshl_add_u32 v3, v4, 1, v3
        v_add_u32 v3, s76, v3
        v_lshlrev_b32 v5, 1, v3
        v_bfe_u32 v4, v0, 4, 1
        v_lshl_add_u32 v9, v4, 1, v5
        v_lshlrev_b32 v10, 4, v4
        v_bfe_u32 v4, v0, 1, 3
        v_lshl_add_u32 v6, v4, 12, v5
        v_lshrrev_b32 v4, 1, v0
        v_lshlrev_b32 v7, 13, v4
        v_and_b32 v4, 1, v0
        v_lshl_add_u32 v7, v4, 4, v7
        v_add_u32 v8, {32*8192}, v7
        v_mov_b32 v4, 0x7ff00000
        v_cmp_gt_u32 vcc, 48, v0
        v_cndmask_b32 v8, v4, v8, vcc
        """)
        self.srd(SRD_T, 4, 4096)
        a(f"""
        s_lshl_b32 s72, {sW}, 10
        buffer_load_dword v32, v5, {SRD_T}, s72 offen
        s_mul_i32 s73, {sW}, 6144
        s_add_u32 s73, s73, {MB_MOD + 2048}
        s_add_u32 s77, s72, {MB_X}
        s_lshl_b32 s78, {sW}, 11
        s_lshl_b32 s79, s76, 2
        s_add_u32 s78, s78, s79
        s_add_u32 s78, s78, {MB_D}
        """)
        loads = [f"buffer_load_dword v33, v5, {SRD_WS}, s73 offen sc1",
                 f"buffer_load_dword v34, v5, {SRD_WS}, s73 offen offset:3072 sc1",
                 f"buffer_load_dword v35, v6, {SRD_WS}, s77 offen sc1"]
        for l in loads: a(l)
        self.srd(SRD_T, 26, 4096)
        a("s_waitcnt vmcnt(0)")
        self.poll_check(loads, [33, 34, 35], "v3", "pr1")
        self.stamp(9)
        dl = [f"buffer_load_dwordx4 v[40:43], v7, {SRD_WS}, s78 offen sc1",
              f"buffer_load_dwordx4 v[44:47], v8, {SRD_WS}, s78 offen sc1"]
        for l in dl: a(l)
        for r in range(32, 36): a(f"v_lshrrev_b32 v{r}, v10, v{r}")
        for r in range(32, 36): a(f"v_lshlrev_b32 v{r}, 16, v{r}")
        a(f"""
        v_add_f32_dpp v35, v35, v35 quad_perm:[2,3,0,1] {FULL}
        v_add_f32_dpp v35, v35, v35 row_ror:4 {FULL}
        v_add_f32_dpp v35, v35, v35 row_ror:8 {FULL}
        v_fmac_f32 v32, v33, v35
        s_waitcnt vmcnt(0)
        """)
        self.poll_check(dl, range(40, 48), "v3", "pr2")
        self.stamp(10)
        for r in range(4): a(f"v_add_f32 v{40+r}, v{40+r}, v{44+r}")
        a(f"""
        v_permlane32_swap_b32 v40, v42
        v_permlane32_swap_b32 v41, v43
        v_add_f32 v40, v40, v42
        v_add_f32 v41, v41, v43
        v_permlane16_swap_b32 v40, v41
        v_add_f32 v40, v40, v41
        v_add_f32_dpp v40, v40, v40 quad_perm:[2,3,0,1] {FULL}
        v_add_f32_dpp v40, v40, v40 row_ror:4 {FULL}
        v_add_f32_dpp v40, v40, v40 row_ror:8 {FULL}
        v_fmac_f32 v32, v34, v40
        v_cvt_pk_bf16_f32 v32, v32, v32
        s_mov_b32 exec_lo, 0x00030003
        s_mov_b32 exec_hi, 0x00030003
        buffer_store_short v32, v9, {SRD_T}, s72 offen
        s_mov_b64 exec, -1
        """)
        self.stamp(11)
        a("s_branch L_fin")

    def build(self):
        a = self.a
        self.prologue()
        self.phase_a()
        self.k_stream()
        self.attention()
        a(f"""
        s_cmp_eq_u32 {sROLE}, {R_O}
        s_cbranch_scc1 L_role_o
        s_cmp_eq_u32 {sROLE}, {R_FD}
        s_cbranch_scc1 L_role_fd
        s_cmp_eq_u32 {sROLE}, {R_Q}
        s_cbranch_scc1 L_role_r
        s_branch L_fin
        """)
        self.role_o()
        self.role_fd()
        self.role_r()
        for c in self.cold: a(c)
        a("L_fin:")
        self.stamp_flush()
        a("L_exit:\n s_endpgm\n L_code_end:")
        text, n = fix_hazards(a.text())
        return text


HEADER = """; Fused decode layer (adaLN conditioning, GQA attention over the cached K/V, gated GELU MLP), one launch.
"""
def generate(**kw):
    g = Gen(**kw)
    body = g.build()
    return wrap(body, 256, 512, L_END, vgpr=256, accum=256, sgpr=102, header=HEADER)

if __name__ == "__main__":
    import json
    out = sys.argv[1]
    kw = json.loads(sys.argv[2]) if len(sys.argv) > 2 else {}
    open(out, "w").write(generate(**kw))
```

```python
import sys, math
from asmgen import Asm, wrap, fix_hazards, KNAME

MB_MOD = 0x00000
MB_Q   = 0x08000
MB_ML  = 0x10000
MB_X   = 0x18000
MB_O   = 0x40000
MB_D   = 0x80000
WS_SPAN = 0x100000
STAMPS = 0x100000
L_SLAB = 0
L_DOWN = 65536
L_ACT  = 98304
L_RED  = L_ACT + 4352
L_ML   = L_RED + 8*2304
L_CNT  = L_ML + 256
L_HH   = L_CNT + 64
L_END  = L_HH + 256
ACT_STRIDE = 1088
R_FREE, R_Q, R_O, R_M, R_FD = 0, 1, 2, 3, 4
ROLE = [
    [(R_Q,0),(R_Q,4),(R_O,0),(R_O,4),(R_M,0),(R_FD,0),(R_M,4),(R_FREE,0)],
    [(R_Q,1),(R_Q,5),(R_O,1),(R_O,5),(R_M,1),(R_FD,1),(R_FD,4),(R_FREE,0)],
    [(R_Q,2),(R_Q,6),(R_O,2),(R_O,6),(R_M,2),(R_FD,2),(R_FD,5),(R_FREE,0)],
    [(R_Q,3),(R_Q,7),(R_O,3),(R_O,7),(R_M,3),(R_FD,3),(R_M,5),(R_FD,6)],
]
TILES = [
    [64,64,63,63,63,60,64,71],
    [64,64,64,64,64,60,60,72],
    [64,64,64,64,64,60,60,72],
    [65,65,65,65,65,61,65,61],
]
NT = 9
LOG2E = 1.4426950408889634
def f2u(x):
    import struct
    return struct.unpack("<I", struct.pack("<f", x))[0]

sX, sJ, sB, sS, sW, sROLE, sRI, sT0, sNT, sLOC, sFLAG, sSPIN = (f"s{i}" for i in range(60, 72))
sRB, sRS = "s74", "s75"
sPLO, sPHI, sC2, sB7, sB8, sSO = "s80", "s81", "s82", "s83", "s84", "s85"
sDLO, sDHI = "s96", "s97"
SRD_K, SRD_V, SRD_WS, SRD_DBG, SRD_R1, SRD_R2, SRD_T = (f"s[{i}:{i+3}]" for i in range(32, 60, 4))
vKO, vVO = "v1", "v2"
vM, vL, vF = "v9", "v10", "v11"
Q0 = 12
D0 = 16
VS = 32
KB = 96
SP = 240
def vr(a, n=1):
    return f"v{a}" if n == 1 else f"v[{a}:{a+n-1}]"
def Kreg(i): return KB + 16*i
def Dreg(i): return D0 if i == 0 else Kreg(i-1)
def Vreg(i): return VS + 16*i if i < 4 else Kreg(i-4)
def Preg(i): return Kreg(8) + 2*i if i < 8 else Q0
ACC = Kreg(5)
PT = Kreg(7)
FULL = "row_mask:0xf bank_mask:0xf"


class Gen:
    def __init__(self, kvf="nt", wf="nt", depth=5, stamps=False, force_slow=False, tq=4, tf=5, td=0, spin=40000, tiles=None):
        self.a = Asm()
        self.kvf, self.wf, self.D = kvf, wf, depth
        self.stamps, self.force_slow, self.tq, self.tf, self.spin = stamps, force_slow, tq, tf, spin
        self.td = td
        self.tiles = tiles or TILES
        for row in self.tiles:
            assert sum(row) == 512 and max(row) <= 72 and min(row) >= 57
        self.cold = []
        self.vm = []

    def srd(self, srd, base, nbytes, off=None):
        i = int(srd[2:srd.index(":")])
        a = self.a
        if off is None:
            a(f"s_mov_b32 s{i}, s{base}\n s_mov_b32 s{i+1}, s{base+1}")
        else:
            a(f"s_add_u32 s{i}, s{base}, {off}\n s_addc_u32 s{i+1}, s{base+1}, 0")
        a(f"s_mov_b32 s{i+2}, {nbytes}\n s_mov_b32 s{i+3}, 0x00020000")

    def stamp(self, k):
        if not self.stamps: return
        self.a(f"s_memrealtime s[98:99]\n s_waitcnt lgkmcnt(0)\n v_writelane_b32 v255, s98, {k}")

    def stamp_flush(self):
        if not self.stamps: return
        a = self.a
        a(f"""
        s_lshl_b32 s72, s2, 3
        s_add_u32 s72, s72, {sW}
        s_lshl_b32 s72, s72, 6
        s_add_u32 s72, s72, {STAMPS}
        s_add_u32 s56, s30, s72
        s_addc_u32 s57, s31, 0
        s_mov_b32 s58, 64
        s_mov_b32 s59, 0x00020000
        s_mov_b64 exec, -1
        v_lshlrev_b32 v3, 2, v0
        buffer_store_dword v255, v3, {SRD_T}, 0 offen
        """)

    def issued(self, tag):
        self.vm.append(tag)
    def after(self, tag):
        idx = max(i for i, t in enumerate(self.vm) if t == tag)
        return len(self.vm) - 1 - idx
    def throttle(self):
        self.a(f"s_waitcnt vmcnt({self.D-1})")

    def sentinel_max(self, dst, regs):
        a = self.a
        regs = list(regs)
        if len(regs) == 1:
            return f"v{regs[0]}"
        if len(regs) == 2:
            a(f"v_max_u32 {dst}, v{regs[0]}, v{regs[1]}"); return dst
        a(f"v_max3_u32 {dst}, v{regs[0]}, v{regs[1]}, v{regs[2]}")
        r = regs[3:]
        while len(r) >= 2:
            a(f"v_max3_u32 {dst}, v{r[0]}, v{r[1]}, {dst}"); r = r[2:]
        if r: a(f"v_max_u32 {dst}, v{r[0]}, {dst}")
        return dst

    def poll_check(self, loads, regs, tmp, name):
        a = self.a
        lab = a.label("L_" + name)
        m = self.sentinel_max(tmp, regs)
        a(f"v_cmp_eq_u32 vcc, -1, {m}\n s_cbranch_vccnz {lab}_spin\n {lab}_ok:")
        b = Asm(); sv = self.a; self.a = b
        b(f"{lab}_spin:\n s_mov_b32 {sSPIN}, 0\n {lab}_loop:")
        for l in loads: b(l)
        b("s_waitcnt vmcnt(0)")
        m = self.sentinel_max(tmp, regs)
        b(f"""v_cmp_eq_u32 vcc, -1, {m}
        s_cbranch_vccz {lab}_ok
        s_add_u32 {sSPIN}, {sSPIN}, 1
        s_cmp_lt_u32 {sSPIN}, {self.spin}
        s_cbranch_scc1 {lab}_loop
        s_branch {lab}_ok""")
        self.a = sv
        self.cold.append(b.text())

    def store_local(self, instr):
        a = self.a
        lab = a.label("L_st")
        a(f"s_cmp_eq_u32 {sLOC}, 0\n s_cbranch_scc1 {lab}_slow\n {instr}\n {lab}_done:")
        self.cold.append(f"{lab}_slow:\n    {instr} sc1\n    s_branch {lab}_done\n")

    def allreduce64(self, v, t, op="v_add_f32"):
        a = self.a
        a(f"{op}_dpp {v}, {v}, {v} quad_perm:[1,0,3,2] {FULL}")
        a(f"{op}_dpp {v}, {v}, {v} quad_perm:[2,3,0,1] {FULL}")
        a(f"{op}_dpp {v}, {v}, {v} row_ror:4 {FULL}")
        a(f"{op}_dpp {v}, {v}, {v} row_ror:8 {FULL}")
        self.rows_reduce(v, t, op)
    def rows_reduce(self, v, t, op):
        a = self.a
        a(f"v_mov_b32 {t}, {v}\n v_permlane16_swap_b32 {v}, {t}\n {op} {v}, {v}, {t}")
        a(f"v_mov_b32 {t}, {v}\n v_permlane32_swap_b32 {v}, {t}\n {op} {v}, {v}, {t}")

    def unpack8(self, src, dst):
        a = self.a
        for r in range(4):
            a(f"v_lshlrev_b32 v{dst+2*r}, 16, v{src+r}")
            a(f"v_and_b32 v{dst+2*r+1}, 0xffff0000, v{src+r}")

    def layernorm8(self, x, t0, t1):
        a = self.a
        a(f"v_add_f32 v{t0}, v{x}, v{x+1}\n v_add_f32 v{t1}, v{x+2}, v{x+3}")
        a(f"v_add_f32 v{t0}, v{t0}, v{x+4}\n v_add_f32 v{t1}, v{t1}, v{x+5}")
        a(f"v_add_f32 v{t0}, v{t0}, v{x+6}\n v_add_f32 v{t1}, v{t1}, v{x+7}")
        a(f"v_add_f32 v{t0}, v{t0}, v{t1}")
        self.allreduce64(f"v{t0}", f"v{t1}")
        a(f"v_mul_f32 v{t0}, {hex(f2u(1/512))}, v{t0}")
        for r in range(8): a(f"v_sub_f32 v{x+r}, v{x+r}, v{t0}")
        a(f"v_mul_f32 v{t0}, v{x}, v{x}\n v_mul_f32 v{t1}, v{x+1}, v{x+1}")
        for r in range(2, 8): a(f"v_fmac_f32 v{t0 if r%2==0 else t1}, v{x+r}, v{x+r}")
        a(f"v_add_f32 v{t0}, v{t0}, v{t1}")
        self.allreduce64(f"v{t0}", f"v{t1}")
        a(f"v_mov_b32 v{t1}, {hex(f2u(1e-5))}\n v_fmac_f32 v{t1}, {hex(f2u(1/512))}, v{t0}\n v_rsq_f32 v{t0}, v{t1}")
        for r in range(8): a(f"v_mul_f32 v{x+r}, v{x+r}, v{t0}")

    def minibar(self, target):
        a = self.a
        lab = a.label("L_mb")
        a(f"""
        s_waitcnt lgkmcnt(0)
        v_mov_b32 v3, {L_CNT+4}
        v_mov_b32 v4, 1
        s_mov_b64 exec, 1
        ds_add_u32 v3, v4
        s_mov_b64 exec, -1
        {lab}:
        ds_read_b32 v4, v3
        s_waitcnt lgkmcnt(0)
        v_readfirstlane_b32 s72, v4
        s_cmp_ge_u32 s72, {target}
        s_cbranch_scc0 {lab}
        """)

    def slab_addr128(self, dst, ct_is_wave=True):
        a = self.a
        a(f"""
        v_lshrrev_b32 v3, 4, v0              ; g
        v_bfe_u32 v4, v0, 2, 2               ; rr
        v_lshl_add_u32 v5, v3, 3, v4         ; 8g+rr
        v_lshlrev_b32 v5, 7, v5
        v_and_b32 v3, 1, v3
        v_lshlrev_b32 v3, 1, v3
        v_lshrrev_b32 v4, 1, v4
        v_or_b32 v3, v3, v4                  ; phi
        """)
        if ct_is_wave: a(f"v_xor_b32 v3, {sW}, v3")
        a(f"""
        v_lshl_add_u32 v5, v3, 5, v5
        v_and_b32 v4, 3, v0
        v_lshl_add_u32 {dst}, v4, 3, v5
        """)

    def dma_slab128(self, nwaves, rowstride, throttle):
        a = self.a
        per = 64 // nwaves
        a(f"""
        v_lshrrev_b32 v3, 3, v0
        v_mul_u32_u24 v4, {rowstride}, v3
        v_and_b32 v5, 2, v3
        v_and_b32 v3, 7, v0
        v_xor_b32 v3, v3, v5
        v_lshl_add_u32 v6, v3, 4, v4
        v_xor_b32 v3, 4, v3
        v_lshl_add_u32 v7, v3, 4, v4
        s_mul_i32 s87, {sW}, {per*8*rowstride}
        s_mul_i32 s86, {sW}, {per*1024}
        """)
        for i in range(per):
            if throttle: self.throttle()
            a(f"s_add_u32 m0, s86, {L_SLAB + i*1024}")
            a(f"buffer_load_dwordx4 {'v6' if i%2==0 else 'v7'}, {SRD_R1}, s87 offen {self.wf} lds")
            if i != per-1: a(f"s_add_u32 s87, s87, {8*rowstride}")

    def gemv_small(self):
        a = self.a
        self.slab_addr128("v52")
        a(f"""
        v_and_b32 v3, 3, v0
        v_mul_u32_u24 v4, {ACT_STRIDE}, v3
        v_lshrrev_b32 v5, 4, v0
        v_lshl_add_u32 v53, v5, 4, v4
        v_add_u32 v53, {L_ACT}, v53
        v_mul_lo_u32 v54, v3, {sRS}
        v_lshl_add_u32 v54, v5, 3, v54
        s_lshl_b32 s72, {sW}, 5
        v_add_u32 v54, s72, v54
        """)
        for ch in range(4):
            for k in range(4):
                t = 4*ch + k
                a(f"ds_read_b64_tr_b16 v[{56+4*k}:{57+4*k}], v52 offset:{L_SLAB + t*4096}")
                a(f"ds_read_b64_tr_b16 v[{58+4*k}:{59+4*k}], v52 offset:{L_SLAB + t*4096 + 512}")
                a(f"ds_read_b128 v[{72+4*k}:{75+4*k}], v53 offset:{t*64}")
            for k in range(4):
                a(f"s_waitcnt lgkmcnt({3*(3-k)})")
                c = "0" if (ch == 0 and k == 0) else "v[44:47]"
                a(f"v_mfma_f32_16x16x32_bf16 v[44:47], v[{56+4*k}:{59+4*k}], v[{72+4*k}:{75+4*k}], {c}")
        a("""
        v_cvt_pk_bf16_f32 v48, v44, v45
        v_cvt_pk_bf16_f32 v49, v46, v47
        v_min_u32 v48, -2, v48
        v_min_u32 v49, -2, v49
        s_mov_b32 exec_lo, 0x000f000f
        s_mov_b32 exec_hi, 0x000f000f
        """)

    def prologue(self):
        a = self.a
        a(f"""
        s_cmp_ge_u32 s2, 256
        s_cbranch_scc1 L_exit
        s_load_dwordx16 s[4:19], s[0:1], 0
        s_load_dwordx8 s[20:27], s[0:1], 64
        s_load_dwordx4 s[28:31], s[0:1], 96
        s_getpc_b64 s[72:73]
        L_pc:
        v_lshlrev_b32 v3, 6, v0
        v_cmp_gt_u32 vcc, L_code_end-L_pc, v3
        s_and_saveexec_b64 s[88:89], vcc
        s_cbranch_execz L_nopf
        global_load_dword v{SP}, v3, s[72:73]
        L_nopf:
        s_mov_b64 exec, s[88:89]
        v_lshrrev_b32 v1, 6, v0
        v_and_b32 v0, 63, v0
        s_and_b32 {sX}, s2, 7
        v_readfirstlane_b32 {sW}, v1
        s_lshr_b32 {sJ}, s2, 3
        s_and_b32 {sB}, {sJ}, 3
        s_lshr_b32 {sS}, {sJ}, 2
        v_mov_b32 v3, {L_CNT}
        v_mov_b32 v4, 0
        v_mov_b32 v5, 0
        ds_write_b64 v3, v[4:5]
        """)
        if self.stamps:
            a("v_mov_b32 v255, 0")
        def pack(f):
            out = []
            for b in range(4):
                v = 0
                for s in range(8):
                    x = f(b, s); assert 0 <= x < 16, (b, s, x)
                    v |= x << (4*s)
                out.append(v)
            return out
        t0 = lambda b, s: sum(self.tiles[b][:s])
        tabs = [pack(lambda b, s: ROLE[b][s][0]), pack(lambda b, s: ROLE[b][s][1]),
                pack(lambda b, s: t0(b, s) - 64*s + 8), pack(lambda b, s: self.tiles[b][s] - 57)]
        regs = ["s76", "s77", "s78", "s79"]
        for r, t in zip(regs, tabs): a(f"s_mov_b32 {r}, {hex(t[0])}")
        for b in range(1, 4):
            a(f"s_cmp_eq_u32 {sB}, {b}")
            for r, t in zip(regs, tabs): a(f"s_cselect_b32 {r}, {hex(t[b])}, {r}")
        a(f"s_lshl_b32 s72, {sS}, 2")
        for r in regs: a(f"s_lshr_b32 {r}, {r}, s72\n s_and_b32 {r}, {r}, 15")
        a(f"""
        s_mov_b32 {sROLE}, s76
        s_mov_b32 {sRI}, s77
        s_lshl_b32 s72, {sS}, 6
        s_add_u32 s72, s72, s78
        s_sub_u32 {sT0}, s72, 8
        s_add_u32 {sNT}, s79, 57
        v_lshlrev_b32 {vVO}, 4, v0
        v_and_b32 v3, 3, v0
        v_lshrrev_b32 v4, 4, v0
        v_lshlrev_b32 v5, 4, v3
        v_lshl_add_u32 v5, v4, 6, v5
        v_bfe_u32 v3, v0, 2, 2
        v_lshl_add_u32 {vKO}, v3, 8, v5
        s_lshl_b32 s72, {sB}, 3
        s_add_u32 s72, s72, {sX}
        s_lshl_b32 s76, s72, 21
        s_add_u32 s77, {sT0}, {sW}
        s_lshl_b32 s77, s77, 12
        s_add_u32 s76, s76, s77
        s_sub_u32 s77, {sNT}, {sW}
        s_lshl_b32 s34, s77, 12
        s_mov_b32 s38, s34
        s_mov_b32 s35, 0x00020000
        s_mov_b32 s39, 0x00020000
        s_cmp_gt_u32 s77, 56
        s_cselect_b32 {sB7}, 0, 0xff800000
        s_cmp_gt_u32 s77, 64
        s_cselect_b32 {sB8}, 0, 0xff800000
        s_mov_b32 {sPLO}, 0x05040100
        s_mov_b32 {sPHI}, 0x07060302
        s_mov_b32 {sC2}, {hex(f2u(LOG2E/math.sqrt(128.0)))}
        s_mov_b32 {sDLO}, 0x00003f80
        s_mov_b32 {sDHI}, 0x3f800000
        s_mov_b32 {sLOC}, 0
        s_getreg_b32 {sFLAG}, hwreg(HW_REG_XCC_ID, 0, 4)
        s_mul_i32 s72, {sFLAG}, {sFLAG}
        s_lshl_b32 s72, s72, 14
        s_lshl_b32 {sFLAG}, {sFLAG}, 6
        s_or_b32 {sFLAG}, {sFLAG}, s72
        s_or_b32 {sFLAG}, {sFLAG}, 1
        s_lshl_b32 s72, {sRI}, 3
        s_add_u32 s72, s72, {sX}
        s_lshl_b32 s72, s72, 7
        s_add_u32 s72, s72, {MB_MOD}          ; M
        s_lshl_b32 s73, {sX}, 3
        s_add_u32 s73, s73, {sRI}
        s_lshl_b32 s73, s73, 7
        s_add_u32 s73, s73, {MB_Q}            ; Q
        s_lshl_b32 s77, {sX}, 12
        s_lshl_b32 s78, {sRI}, 7
        s_add_u32 s77, s77, s78
        s_add_u32 s77, s77, {MB_X}            ; O
        s_mul_i32 s78, {sX}, 7
        s_add_u32 s78, s78, {sRI}
        s_lshl_b32 s78, s78, 13
        s_add_u32 s78, s78, {MB_D}            ; FD
        s_mov_b32 {sRB}, s72
        s_mov_b32 {sRS}, 6144
        s_cmp_eq_u32 {sROLE}, {R_Q}
        s_cselect_b32 {sRB}, s73, {sRB}
        s_cselect_b32 {sRS}, 8192, {sRS}
        s_cmp_eq_u32 {sROLE}, {R_O}
        s_cselect_b32 {sRB}, s77, {sRB}
        s_cselect_b32 {sRS}, 1024, {sRS}
        s_cmp_eq_u32 {sROLE}, {R_FD}
        s_cselect_b32 {sRB}, s78, {sRB}
        s_waitcnt lgkmcnt(0)
        s_add_u32 s32, s6, s76
        s_addc_u32 s33, s7, 0
        s_add_u32 s36, s8, s76
        s_addc_u32 s37, s9, 0
        """)
        self.srd(SRD_WS, 30, WS_SPAN)
        self.srd(SRD_DBG, 28, 256)
        a("s_barrier")
        self.stamp(0)

    def phase_a_early(self):
        a = self.a
        a(f"""
        s_cmp_ge_u32 {sW}, 4
        s_cbranch_scc1 L_a_done
        s_cmp_eq_u32 {sROLE}, {R_Q}
        s_cbranch_scc1 L_a_q
        s_cmp_eq_u32 {sROLE}, {R_M}
        s_cbranch_scc0 L_a_done
        """)
        self.srd(SRD_T, 22, 4096)
        a(f"""
        s_lshl_b32 s72, {sW}, 10
        buffer_load_dwordx4 v[32:35], {vVO}, {SRD_T}, s72 offen
        s_sub_u32 s72, {sRB}, {MB_MOD}
        s_add_u32 s48, s24, s72
        s_addc_u32 s49, s25, 0
        s_sub_u32 s50, {512*6144}, s72
        s_mov_b32 s51, 0x00020000
        """)
        self.dma_slab128(4, 6144, False)
        a("s_branch L_a_done\n L_a_q:")
        self.srd(SRD_T, 4, 4096)
        a(f"""
        s_lshl_b32 s72, {sW}, 10
        buffer_load_dwordx4 v[32:35], {vVO}, {SRD_T}, s72 offen
        s_sub_u32 s72, {sRB}, {MB_Q}
        s_add_u32 s48, s10, s72
        s_addc_u32 s49, s11, 0
        s_sub_u32 s50, {512*8192}, s72
        s_mov_b32 s51, 0x00020000
        """)
        self.dma_slab128(4, 8192, False)
        a("L_a_done:")

    def clears(self):
        a = self.a
        a(f"""
        s_cmp_eq_u32 {sW}, 7
        s_cbranch_scc0 L_noclear
        v_mov_b32 v32, -1
        v_mov_b32 v33, -1
        v_mov_b32 v34, -1
        v_mov_b32 v35, -1
        s_lshl_b32 s72, {sX}, 2
        s_add_u32 s72, s72, {sB}
        s_lshl_b32 s72, s72, 3
        s_add_u32 s72, s72, {sS}
        s_lshl_b32 s72, s72, 10
        s_add_u32 s72, s72, {MB_O}
        buffer_store_dwordx4 v[32:35], {vVO}, {SRD_WS}, s72 offen sc1
        s_lshl_b32 s72, {sB}, 3
        s_add_u32 s72, s72, {sX}
        s_lshl_b32 s72, s72, 3
        s_add_u32 s72, s72, {sS}
        s_lshl_b32 s72, s72, 5
        s_add_u32 s72, s72, {MB_ML}
        s_mov_b64 exec, 3
        buffer_store_dwordx4 v[32:35], {vVO}, {SRD_WS}, s72 offen sc1
        s_mov_b64 exec, -1
        s_cmp_eq_u32 {sROLE}, {R_FREE}
        s_cbranch_scc1 L_cleared
        s_cmp_eq_u32 {sROLE}, {R_FD}
        s_cbranch_scc1 L_clear_fd
        v_lshrrev_b32 v3, 3, v0
        v_mul_lo_u32 v3, v3, {sRS}
        v_and_b32 v4, 7, v0
        v_lshl_add_u32 v3, v4, 4, v3
        s_mov_b32 exec_hi, 0
        buffer_store_dwordx4 v[32:35], v3, {SRD_WS}, {sRB} offen sc1
        s_mov_b64 exec, -1
        s_branch L_cleared
        L_clear_fd:
        s_add_u32 s72, {sRB}, 4096
        """)
        for i in range(8):
            a(f"buffer_store_dwordx4 v[32:35], {vVO}, {SRD_WS}, {sRB if i < 4 else 's72'} offen offset:{(i%4)*1024} sc1")
        a(f"""
        L_cleared:
        s_lshl_b32 s72, {sX}, 5
        v_mov_b32 v3, s72
        v_mov_b32 v4, {sFLAG}
        s_waitcnt vmcnt(0)
        """)
        self.stamp(12)
        a(f"""
        s_mov_b64 exec, 1
        buffer_atomic_add v4, v3, {SRD_DBG}, 0 offen sc1
        s_mov_b64 exec, -1
        L_noclear:
        """)

    def phase_a_late(self):
        a = self.a
        a(f"""
        s_cmp_eq_u32 {sROLE}, {R_FD}
        s_cbranch_scc1 L_a_fd
        s_cmp_eq_u32 {sROLE}, {R_O}
        s_cbranch_scc0 L_a2_done
        s_lshl_b32 s72, {sX}, 19
        s_lshl_b32 s73, {sRI}, 7
        s_add_u32 s72, s72, s73
        s_add_u32 s48, s12, s72
        s_addc_u32 s49, s13, 0
        s_sub_u32 s50, {4096*1024}, s72
        s_mov_b32 s51, 0x00020000
        """)
        self.dma_slab128(8, 1024, True)
        a("s_branch L_a2_done\n L_a_fd:")
        a(f"""
        s_mul_i32 s72, {sX}, 448
        s_lshl_b32 s73, {sRI}, 6
        s_add_u32 s72, s72, s73
        s_add_u32 s48, s16, s72
        s_addc_u32 s49, s17, 0
        s_sub_u32 s50, {512*3584}, s72
        s_mov_b32 s51, 0x00020000
        s_add_u32 s52, s18, s72
        s_addc_u32 s53, s19, 0
        s_mov_b32 s54, s50
        s_mov_b32 s55, 0x00020000
        v_lshrrev_b32 v3, 2, v0
        v_mul_u32_u24 v4, 3584, v3
        v_lshrrev_b32 v3, 3, v3
        v_and_b32 v5, 3, v0
        v_xor_b32 v5, v5, v3
        v_lshl_add_u32 v6, v5, 4, v4
        v_xor_b32 v5, 2, v5
        v_lshl_add_u32 v7, v5, 4, v4
        s_mul_i32 s87, {sW}, {64*3584}
        s_lshl_b32 s86, {sW}, 12
        """)
        for i in range(4):
            self.throttle()
            a(f"s_add_u32 m0, s86, {L_SLAB + i*1024}")
            a(f"buffer_load_dwordx4 v6, {SRD_R1}, s87 offen {self.wf} lds")
            self.throttle()
            a(f"s_add_u32 m0, s86, {L_SLAB + 32768 + i*1024}")
            a(f"buffer_load_dwordx4 v7, {SRD_R2}, s87 offen {self.wf} lds")
            if i != 3: a(f"s_add_u32 s87, s87, {16*3584}")
        a(f"""
        s_sub_u32 s72, {sRB}, {MB_D}
        s_lshl_b32 s72, s72, 2               ; p*32 rows*1024
        s_lshl_b32 s73, {sW}, 12
        s_add_u32 s72, s72, s73
        s_add_u32 s56, s20, s72
        s_addc_u32 s57, s21, 0
        s_mov_b32 s58, 4096
        s_mov_b32 s59, 0x00020000
        """)
        for i in range(4):
            swz = ((i & 1) << 3) | (i >> 1)
            a(f"v_xor_b32 v3, {swz}, v0\n v_lshlrev_b32 v3, 4, v3\n v_add_u32 v3, {i*1024}, v3")
            self.throttle()
            a(f"s_add_u32 m0, s86, {L_DOWN + i*1024}")
            a(f"buffer_load_dwordx4 v3, {SRD_T}, 0 offen {self.wf} lds")
        a("L_a2_done:")

    def load_tile(self, kind, i, throttle=True):
        a = self.a
        base = Kreg(i) if kind == "K" else Vreg(i)
        a(f"s_mov_b32 {sSO}, {i*32768}")
        for t in range(4):
            self.load_one(kind, i, t, throttle, setso=False)
    def load_one(self, kind, i, t, throttle=True, setso=True):
        a = self.a
        base = Kreg(i) if kind == "K" else Vreg(i)
        if setso: a(f"s_mov_b32 {sSO}, {i*32768}")
        if throttle: self.throttle()
        a(f"buffer_load_dwordx4 {vr(base+4*t,4)}, {vKO if kind=='K' else vVO}, {SRD_K if kind=='K' else SRD_V}, {sSO} offen offset:{t*1024} {self.kvf}")
        self.issued(f"{kind}{i}")

    def flags_load(self):
        return f"buffer_load_dword v{SP}, v{SP+1}, {SRD_DBG}, 0 offen sc1"
    def flags_check(self):
        a = self.a
        lab = a.label("L_fl")
        a(f"""
        v_and_b32 v{SP+2}, 63, v{SP}
        v_cmp_ne_u32 vcc, 32, v{SP+2}
        s_cbranch_vccnz {lab}_spin
        {lab}_ok:
        s_lshl_b32 s72, {sFLAG}, 5
        v_cmp_eq_u32 vcc, s72, v{SP}
        s_lshr_b32 s90, vcc_lo, {sX}
        s_and_b32 {sLOC}, s90, {0 if self.force_slow else 1}
        """)
        self.cold.append(f"""{lab}_spin:
    s_mov_b32 {sSPIN}, 0
{lab}_loop:
    {self.flags_load()}
    s_waitcnt vmcnt(0)
    v_and_b32 v{SP+2}, 63, v{SP}
    v_cmp_ne_u32 vcc, 32, v{SP+2}
    s_cbranch_vccz {lab}_ok
    s_sleep 8
    s_add_u32 {sSPIN}, {sSPIN}, 1
    s_cmp_lt_u32 {sSPIN}, {self.spin}
    s_cbranch_scc1 {lab}_loop
    s_branch {lab}_ok
""")

    def hook_after_tile0(self):
        a = self.a
        a(f"""
        s_cmp_ge_u32 {sW}, 4
        s_cbranch_scc1 L_h0_done
        s_cmp_eq_u32 {sROLE}, {R_Q}
        s_cbranch_scc1 L_h0_q
        s_cmp_eq_u32 {sROLE}, {R_M}
        s_cbranch_scc0 L_h0_done
        """)
        a("s_waitcnt vmcnt(20)")
        self.unpack8(32, 36)
        for r in range(8): a(f"v_mul_f32 v{44+r}, {hex(f2u(-LOG2E))}, v{36+r}")
        for r in range(8): a(f"v_exp_f32 v{44+r}, v{44+r}")
        for r in range(8): a(f"v_add_f32 v{44+r}, 1.0, v{44+r}")
        for r in range(8): a(f"v_rcp_f32 v{44+r}, v{44+r}")
        for r in range(8): a(f"v_mul_f32 v{36+r}, v{36+r}, v{44+r}")
        for r in range(4): a(f"v_cvt_pk_bf16_f32 v{32+r}, v{36+2*r}, v{37+2*r}")
        a(f"""
        s_mul_i32 s72, {sW}, {ACT_STRIDE}
        s_add_u32 s72, s72, {L_ACT}
        v_add_u32 v3, s72, {vVO}
        ds_write_b128 v3, v[32:35]
        s_waitcnt vmcnt(4)
        """)
        self.minibar(4)
        self.stamp(1)
        self.gemv_small()
        a(f"buffer_store_dwordx2 v[48:49], v54, {SRD_WS}, {sRB} offen sc1\n s_mov_b64 exec, -1")
        self.stamp(2)
        a("s_branch L_h0_done\n L_h0_q:")
        a("s_waitcnt vmcnt(20)")
        self.unpack8(32, 36)
        self.layernorm8(36, 44, 45)
        a("L_h0_done:")

    def hook_q(self):
        a = self.a
        a(f"""
        s_cmp_ge_u32 {sW}, 4
        s_cbranch_scc1 L_hq_done
        s_cmp_eq_u32 {sROLE}, {R_Q}
        s_cbranch_scc0 L_hq_done
        v_and_b32 v{SP+1}, 7, v0
 v_lshlrev_b32 v{SP+1}, 5, v{SP+1}
        {self.flags_load()}
        s_waitcnt vmcnt(0)
        """)
        self.flags_check()
        self.stamp(1)
        loads = [f"buffer_load_dwordx4 v[56:59], {vVO}, {SRD_WS}, s73 offen sc1",
                 f"buffer_load_dwordx4 v[60:63], {vVO}, {SRD_WS}, s73 offen offset:1024 sc1"]
        a(f"s_mul_i32 s73, {sW}, 6144\n s_add_u32 s73, s73, {MB_MOD}")
        for l in loads: a(l)
        a("s_waitcnt vmcnt(0)")
        self.poll_check(loads, range(56, 64), "v3", "pm")
        self.stamp(2)
        self.unpack8(56, 64)
        self.unpack8(60, 72)
        for r in range(8): a(f"v_fma_f32 v{72+r}, v{36+r}, v{72+r}, v{36+r}")
        for r in range(8): a(f"v_add_f32 v{72+r}, v{72+r}, v{64+r}")
        for r in range(4): a(f"v_cvt_pk_bf16_f32 v{32+r}, v{72+2*r}, v{73+2*r}")
        a(f"""
        s_mul_i32 s72, {sW}, {ACT_STRIDE}
        s_add_u32 s72, s72, {L_ACT}
        v_add_u32 v3, s72, {vVO}
        ds_write_b128 v3, v[32:35]
        """)
        self.minibar(4)
        self.gemv_small()
        self.store_local(f"buffer_store_dwordx2 v[48:49], v54, {SRD_WS}, {sRB} offen")
        a("s_mov_b64 exec, -1")
        self.stamp(3)
        a("L_hq_done:")

    def k_stream(self):
        a = self.a
        for i in range(NT):
            self.load_tile("K", i)
            if i == 0:
                self.clears()
                self.hook_after_tile0()
            if i == self.td: self.phase_a_late()
            if i == self.tq: self.hook_q()
            if i == self.tf:
                a(f"v_and_b32 v{SP+1}, 7, v0\n v_lshlrev_b32 v{SP+1}, 5, v{SP+1}\n {self.flags_load()}"); self.issued("FL")
            if i == self.tf + 1:
                a(f"s_waitcnt vmcnt({self.after('FL')})")
                self.flags_check()
        self.stamp(4)

    def qk(self):
        a = self.a
        def mf(i):
            for t in range(4):
                a(f"v_mfma_f32_16x16x32_bf16 {vr(Dreg(i)+4*t,4)}, {vr(Kreg(i)+4*t,4)}, {vr(Q0,4)}, 0")
        def red(i):
            for s in range(1, 4):
                for t in range(4):
                    d = Dreg(i) + 4*t
                    a(f"v_add_f32_dpp v{d}, v{d+s}, v{d} row_shl:{4*s} {FULL}")
            if i >= 7:
                for t in range(4):
                    d = Dreg(i) + 4*t
                    a(f"v_add_f32 v{d}, {sB7 if i == 7 else sB8}, v{d}")
        mf(0)
        for i in range(1, NT):
            mf(i); red(i-1)
        red(NT-1)
        S = [Dreg(i) + 4*t for i in range(NT) for t in range(4)]
        a(f"v_max3_f32 {vM}, v{S[0]}, v{S[1]}, v{S[2]}\n v_max3_f32 v3, v{S[3]}, v{S[4]}, v{S[5]}")
        for k in range(6, 36, 2):
            d = vM if (k//2) % 2 else "v3"
            a(f"v_max3_f32 {d}, v{S[k]}, v{S[k+1]}, {d}")
        a(f"v_max_f32 {vM}, {vM}, v3")
        self.rows_reduce(vM, "v3", "v_max_f32")
        a(f"v_mul_f32 {vM}, {sC2}, {vM}")
        for k in range(36): a(f"v_fma_f32 v{S[k]}, v{S[k]}, {sC2}, -{vM}")
        for k in range(36): a(f"v_exp_f32 v{S[k]}, v{S[k]}")
        a(f"v_add_f32 {vL}, v{S[0]}, v{S[1]}\n v_add_f32 v3, v{S[2]}, v{S[3]}")
        for k in range(4, 36): a(f"v_add_f32 {vL if k%2==0 else 'v3'}, {vL if k%2==0 else 'v3'}, v{S[k]}")
        a(f"v_add_f32 {vL}, {vL}, v3")
        for i in range(NT):
            a(f"v_cvt_pk_bf16_f32 v{Preg(i)}, v{S[4*i]}, v{S[4*i+1]}")
            a(f"v_cvt_pk_bf16_f32 v{Preg(i)+1}, v{S[4*i+2]}, v{S[4*i+3]}")
        self.rows_reduce(vL, "v3", "v_add_f32")

    def ml_publish(self):
        a = self.a
        a(f"""
        s_lshl_b32 s72, {sW}, 5
        s_add_u32 s72, s72, {L_ML}
        v_lshl_add_u32 v3, v0, 2, s72
        s_mov_b64 exec, 15
        ds_write2_b32 v3, {vM}, {vL} offset0:0 offset1:4
        v_mov_b32 v4, {L_CNT}
        v_mov_b32 v5, 1
        s_waitcnt lgkmcnt(0)
        s_mov_b64 exec, 1
        ds_add_rtn_u32 v6, v4, v5
        s_mov_b64 exec, -1
        v_and_b32 v4, 3, v0
        v_lshl_add_u32 v5, v4, 2, s72
        ds_read_b32 {vM}, v5
        s_waitcnt lgkmcnt(0)
        v_readfirstlane_b32 s73, v6
        s_cmp_eq_u32 s73, 7
        s_cbranch_scc0 L_ml_done
        v_bfe_u32 v5, v0, 2, 3
        v_lshlrev_b32 v5, 5, v5
        v_lshl_add_u32 v5, v4, 2, v5
        v_add_u32 v5, {L_ML}, v5
        ds_read2_b32 v[6:7], v5 offset0:0 offset1:4
        s_waitcnt lgkmcnt(0)
        """)
        self.ml_merge("v6", "v7", "v8", "v5")
        a(f"""
        v_min_u32 v8, -2, v8
        v_min_u32 v7, -2, v7
        s_lshl_b32 s72, {sB}, 3
        s_add_u32 s72, s72, {sX}
        s_lshl_b32 s72, s72, 3
        s_add_u32 s72, s72, {sS}
        s_lshl_b32 s72, s72, 5
        s_add_u32 s72, s72, {MB_ML}
        v_lshlrev_b32 v4, 2, v4
        s_mov_b64 exec, 15
        """)
        self.store_local(f"buffer_store_dword v8, v4, {SRD_WS}, s72 offen")
        self.store_local(f"buffer_store_dword v7, v4, {SRD_WS}, s72 offen offset:16")
        a("s_mov_b64 exec, -1\n L_ml_done:")

    def ml_merge(self, m, l, M, t):
        a = self.a
        a(f"v_max_f32_dpp {M}, {m}, {m} row_ror:4 {FULL}")
        a(f"v_max_f32_dpp {M}, {M}, {M} row_ror:8 {FULL}")
        a(f"v_mov_b32 {t}, {M}\n v_permlane16_swap_b32 {M}, {t}\n v_max_f32 {M}, {M}, {t}")
        a(f"v_sub_f32 {m}, {m}, {M}\n v_exp_f32 {m}, {m}\n v_mul_f32 {l}, {l}, {m}")
        a(f"v_add_f32_dpp {l}, {l}, {l} row_ror:4 {FULL}")
        a(f"v_add_f32_dpp {l}, {l}, {l} row_ror:8 {FULL}")
        a(f"v_mov_b32 {t}, {l}\n v_permlane16_swap_b32 {l}, {t}\n v_add_f32 {l}, {l}, {t}")

    def pv(self, i):
        a = self.a
        v = Vreg(i)
        for r in range(4):
            for hi in range(2):
                e = 2*r + hi
                sel = sPHI if hi else sPLO
                a(f"v_perm_b32 v{PT+2*e}, v{v+4+r}, v{v+r}, {sel}")
                a(f"v_perm_b32 v{PT+2*e+1}, v{v+12+r}, v{v+8+r}, {sel}")
        for e in range(8):
            c = "0" if i == 0 else vr(ACC+4*e, 4)
            a(f"v_mfma_f32_16x16x16_bf16 {vr(ACC+4*e,4)}, {vr(PT+2*e,2)}, {vr(Preg(i),2)}, {c}")

    def attention(self):
        a = self.a
        D = self.D
        qload = f"buffer_load_dwordx4 {vr(Q0,4)}, v3, {SRD_WS}, s73 offen sc1"
        self.load_tile("V", 0)
        a(f"""
        v_and_b32 v3, 3, v0
        v_lshlrev_b32 v3, 8, v3
        v_lshrrev_b32 v4, 4, v0
        v_lshl_add_u32 v3, v4, 6, v3
        v_bfe_u32 v4, v0, 2, 2
        v_lshl_add_u32 v3, v4, 4, v3
        s_lshl_b32 s73, {sB}, 13
        s_lshl_b32 s72, {sX}, 10
        s_add_u32 s73, s73, s72
        s_add_u32 s73, s73, {MB_Q}
        {qload}
        """)
        self.issued("q")
        self.load_tile("V", 1)
        a(f"s_waitcnt vmcnt({self.after('q')})")
        self.poll_check([qload], range(Q0, Q0+4), "v4", "pq")
        self.stamp(5)
        self.load_tile("V", 2, throttle=False)
        self.load_tile("V", 3, throttle=False)
        self.qk()
        self.stamp(6)
        self.ml_publish()
        seq = [(i, t) for i in range(4, NT) for t in range(4)]
        mlloads = [f"buffer_load_dword v{SP+4}, v{SP+3}, {SRD_WS}, s77 offen sc1",
                   f"buffer_load_dword v{SP+5}, v{SP+3}, {SRD_WS}, s77 offen offset:16 sc1"]
        done = 0
        for n, (i, t) in enumerate(seq):
            self.load_one("V", i, t, throttle=True, setso=(t == 0))
            if (i, t) == (7, 0):
                a(f"""
                v_bfe_u32 v3, v0, 2, 3
                v_lshlrev_b32 v3, 5, v3
                v_and_b32 v4, 3, v0
                v_lshl_add_u32 v{SP+3}, v4, 2, v3
                s_lshl_b32 s77, {sB}, 3
                s_add_u32 s77, s77, {sX}
                s_lshl_b32 s77, s77, 8
                s_add_u32 s77, s77, {MB_ML}
                """)
                for l in mlloads: a(l); self.issued("ML")
            if n >= D-1 and done < 4:
                a(f"s_waitcnt vmcnt({self.after(f'V{done}')})")
                self.pv(done); done += 1
            elif done >= 4 and done < 7 and self.after(f"V{done}") >= D - 1 and (i > done):
                a(f"s_waitcnt vmcnt({self.after(f'V{done}')})")
                self.pv(done); done += 1
        while done < 7:
            a(f"s_waitcnt vmcnt({self.after(f'V{done}')})")
            self.pv(done); done += 1
        a(f"s_waitcnt vmcnt({self.after('ML')})")
        self.poll_check(mlloads, [SP+4, SP+5], "v3", "pml")
        self.ml_merge(f"v{SP+4}", f"v{SP+5}", f"v{SP+6}", "v3")
        a(f"""
        v_sub_f32 {vF}, {vM}, v{SP+6}
        v_exp_f32 {vF}, {vF}
        v_rcp_f32 v{SP+5}, v{SP+5}
        v_mul_f32 {vF}, {vF}, v{SP+5}
        v_and_b32 v3, 3, v0
        v_mul_u32_u24 v3, 288, v3
        v_lshrrev_b32 v4, 2, v0
        v_lshl_add_u32 v3, v4, 4, v3
        s_mul_i32 s72, {sW}, 2304
        s_add_u32 s72, s72, {L_RED}
        v_add_u32 v5, s72, v3
        v_bfe_u32 v3, v0, 1, 1
        v_mul_u32_u24 v3, 1152, v3
        v_lshl_add_u32 v3, v4, 4, v3
        v_and_b32 v4, 1, v0
        v_lshl_add_u32 v3, v4, 3, v3
        s_mul_i32 s72, {sW}, 288
        s_add_u32 s72, s72, {L_RED}
        v_add_u32 v6, s72, v3
        v_lshlrev_b32 v7, 2, v0
        s_lshl_b32 s77, {sX}, 2
        s_add_u32 s77, s77, {sB}
        s_lshl_b32 s77, s77, 3
        s_add_u32 s77, s77, {sS}
        s_lshl_b32 s77, s77, 10
        s_add_u32 s77, s77, {MB_O}
        s_lshl_b32 s72, {sW}, 8
        s_add_u32 s77, s77, s72
        s_cmp_lg_u32 {sB7}, 0
        s_cbranch_scc1 L_pv_done
        s_waitcnt vmcnt({self.after('V7')})
        """)
        self.pv(7)
        a(f"s_cmp_lg_u32 {sB8}, 0\n s_cbranch_scc1 L_pv_done\n s_waitcnt vmcnt(0)")
        self.pv(8)
        a("L_pv_done:")
        self.stamp(7)
        for e in range(8): a(f"v_mul_f32 v{D0+e}, v{ACC+4*e}, {vF}")
        for be in range(1, 4):
            for e in range(8):
                a(f"v_mul_f32_dpp v{D0+e}, v{ACC+4*e+be}, {vF} row_shr:{4*be} row_mask:0xf bank_mask:{hex(1<<be)}")
        a(f"""
        ds_write_b128 v5, {vr(D0,4)}
        ds_write_b128 v5, {vr(D0+4,4)} offset:1152
        s_waitcnt vmcnt(0) lgkmcnt(0)
        s_barrier
        s_cmp_ge_u32 {sW}, 4
        s_cbranch_scc1 L_pub_done
        """)
        for s in range(8): a(f"ds_read_b64 v[{32+2*s}:{33+2*s}], v6 offset:{s*2304}")
        a("s_waitcnt lgkmcnt(6)\n v_add_f32 v32, v32, v34\n v_add_f32 v33, v33, v35")
        for s in range(2, 8):
            a(f"s_waitcnt lgkmcnt({7-s})\n v_add_f32 v32, v32, v{32+2*s}\n v_add_f32 v33, v33, v{33+2*s}")
        a("v_cvt_pk_bf16_f32 v32, v32, v33\n v_min_u32 v32, -2, v32")
        self.store_local(f"buffer_store_dword v32, v7, {SRD_WS}, s77 offen")
        a("L_pub_done:")
        self.stamp(8)

    def role_o(self):
        a = self.a
        a("L_role_o:")
        a(f"""
        v_and_b32 v3, 3, v0
        v_lshlrev_b32 v3, 13, v3
        v_bfe_u32 v4, v0, 2, 2
        v_lshl_add_u32 v3, v4, 10, v3
        v_lshrrev_b32 v4, 4, v0
        v_lshl_add_u32 v8, v4, 4, v3
        s_lshl_b32 s76, {sX}, 15
        s_lshl_b32 s72, {sW}, 7
        s_add_u32 s76, s76, s72
        s_add_u32 s76, s76, {MB_O}
        s_add_u32 s77, s76, 4096
        """)
        loads = [f"buffer_load_dwordx4 v[{32+8*u+4*t}:{35+8*u+4*t}], v8, {SRD_WS}, {'s76' if u == 0 else 's77'} offen offset:{64*t} sc1"
                 for u in range(2) for t in range(2)]
        for l in loads: a(l)
        self.slab_addr128("v9", ct_is_wave=False)
        a(f"s_lshl_b32 s72, {sW}, 13\n v_add_u32 v9, s72, v9")
        for ct in range(4):
            if ct: a(f"v_xor_b32 v10, {32*ct}, v9")
            ad = "v10" if ct else "v9"
            for t in range(2):
                for h in range(2):
                    r = 64 + 8*ct + 4*t + 2*h
                    a(f"ds_read_b64_tr_b16 v[{r}:{r+1}], {ad} offset:{L_SLAB + t*4096 + h*512}")
        a(f"""
        s_lshl_b32 s72, {sW}, 10
        s_add_u32 s72, s72, {L_DOWN}
        v_add_u32 v5, s72, {vVO}
        v_and_b32 v3, 3, v0                  ; g'
        v_lshlrev_b32 v3, 8, v3
        v_bfe_u32 v4, v0, 2, 2               ; tile
        v_lshl_add_u32 v3, v4, 6, v3
        v_lshrrev_b32 v4, 4, v0              ; batch
        v_lshl_add_u32 v6, v4, 4, v3
        v_add_u32 v6, {L_DOWN}, v6
        v_and_b32 v3, 15, v0
        v_lshlrev_b32 v3, 3, v3
        v_lshl_add_u32 v7, v4, 10, v3
        s_waitcnt vmcnt(0)
        """)
        self.poll_check(loads, range(32, 48), "v3", "po")
        self.stamp(9)
        a("s_waitcnt lgkmcnt(0)")
        for k, (u, t) in enumerate([(u, t) for u in range(2) for t in range(2)]):
            for ct in range(4):
                c = "0" if k == 0 else vr(48+4*ct, 4)
                a(f"v_mfma_f32_16x16x32_bf16 {vr(48+4*ct,4)}, {vr(64+8*ct+4*t,4)}, {vr(32+8*u+4*t,4)}, {c}")
        for c in range(2):
            for r in range(4):
                a(f"v_add_f32_dpp v{32+4*c+r}, v{48+4*c+r}, v{48+4*c+r} row_ror:8 row_mask:0xf bank_mask:0x3")
        for c in range(2):
            for r in range(4):
                a(f"v_add_f32_dpp v{32+4*c+r}, v{56+4*c+r}, v{56+4*c+r} row_ror:8 row_mask:0xf bank_mask:0xc")
        for r in range(4):
            a(f"v_add_f32_dpp v{40+r}, v{32+r}, v{32+r} row_shl:4 row_mask:0xf bank_mask:0x5")
        for r in range(4):
            a(f"v_add_f32_dpp v{40+r}, v{36+r}, v{36+r} row_shr:4 row_mask:0xf bank_mask:0xa")
        a(f"""
        ds_write_b128 v5, v[40:43]
        s_waitcnt lgkmcnt(0)
        s_barrier
        s_cmp_eq_u32 {sW}, 0
        s_cbranch_scc0 L_fin
        """)
        for s in range(8): a(f"ds_read_b128 v[{32+4*s}:{35+4*s}], v6 offset:{s*1024}")
        for s in range(1, 8):
            a(f"s_waitcnt lgkmcnt({7-s})")
            for r in range(4): a(f"v_add_f32 v{32+r}, v{32+r}, v{32+4*s+r}")
        a(f"""
        v_cvt_pk_bf16_f32 v32, v32, v33
        v_cvt_pk_bf16_f32 v33, v34, v35
        v_min_u32 v32, -2, v32
        v_min_u32 v33, -2, v33
        buffer_store_dwordx2 v[32:33], v7, {SRD_WS}, {sRB} offen sc1
        """)
        self.stamp(10)
        a("s_branch L_fin")

    def role_fd(self):
        a = self.a
        a("L_role_fd:")
        a(f"""
        v_lshrrev_b32 v3, 4, v0              ; g
        v_bfe_u32 v4, v0, 2, 2               ; rr
        v_lshl_add_u32 v5, v3, 3, v4
        v_lshlrev_b32 v5, 10, v5             ; row*1024
        v_and_b32 v3, 1, v4
        v_lshlrev_b32 v3, 3, v3
        v_lshrrev_b32 v4, 1, v4
        v_or_b32 v3, v3, v4                  ; swizzle
        v_and_b32 v4, 3, v0
        v_lshlrev_b32 v4, 1, v4
        s_lshl_b32 s72, {sW}, 3
        v_add_u32 v4, s72, v4                ; unit 8w+2c'
        v_xor_b32 v6, v4, v3
        v_lshl_add_u32 v6, v6, 4, v5
        v_add_u32 v6, {L_DOWN}, v6
        v_xor_b32 v7, 16, v6
        """)
        for ct in range(4):
            for h in range(2):
                r = 96 + 4*ct + 2*h
                a(f"ds_read_b64_tr_b16 v[{r}:{r+1}], {'v6' if ct < 2 else 'v7'} offset:{h*4096 + (ct&1)*8}")
        a(f"""
        v_bfe_u32 v3, v0, 2, 2
        v_lshrrev_b32 v4, 4, v0
        v_lshlrev_b32 v5, 6, v3
        v_lshl_add_u32 v5, v4, 4, v5
        v_add_u32 v12, {L_HH}, v5
        v_lshlrev_b32 v5, 11, v3
        v_lshl_add_u32 v5, v4, 6, v5
        v_and_b32 v3, 3, v0
        v_lshl_add_u32 v5, v3, 4, v5
        s_lshl_b32 s72, {sW}, 8
        v_add_u32 v13, s72, v5
        s_mov_b32 s90, 0x22222222
        s_mov_b32 s91, 0x22222222
        s_mov_b32 s92, 0x44444444
        s_mov_b32 s93, 0x44444444
        s_mov_b32 s94, 0x88888888
        s_mov_b32 s95, 0x88888888
        s_cmp_ge_u32 {sW}, 4
        s_cbranch_scc1 L_fd_bar1
        """)
        self.srd(SRD_T, 4, 4096)
        a(f"""
        s_lshl_b32 s72, {sW}, 10
        buffer_load_dwordx4 v[32:35], {vVO}, {SRD_T}, s72 offen
        s_mul_i32 s73, {sW}, 6144
        s_add_u32 s73, s73, {MB_MOD + 2048}
        """)
        loads = [f"buffer_load_dwordx4 v[{36+4*k}:{39+4*k}], {vVO}, {SRD_WS}, s73 offen offset:{1024*k} sc1" for k in range(3)]
        for l in loads: a(l)
        a(f"""
        v_lshrrev_b32 v3, 4, v0              ; g
        v_bfe_u32 v4, v0, 2, 2               ; rr
        v_lshl_add_u32 v5, v3, 3, v4
        v_lshlrev_b32 v5, 6, v5              ; row*64
        v_bfe_u32 v4, v0, 1, 1               ; image
        v_lshl_add_u32 v5, v4, 15, v5
        v_and_b32 v3, 1, v3
        v_lshl_or_b32 v3, v4, 1, v3
        v_xor_b32 v3, {sW}, v3
        v_lshl_add_u32 v5, v3, 4, v5
        v_and_b32 v3, 1, v0
        v_lshl_add_u32 v6, v3, 3, v5
        """)
        for t in range(16):
            for h in range(2):
                r = 112 + 4*t + 2*h
                a(f"ds_read_b64_tr_b16 v[{r}:{r+1}], v6 offset:{L_SLAB + t*2048 + h*256}")
        a(f"""
        v_and_b32 v3, 3, v0
        v_mul_u32_u24 v4, {ACT_STRIDE}, v3
        v_lshrrev_b32 v5, 4, v0
        v_lshl_add_u32 v14, v5, 4, v4
        v_add_u32 v14, {L_ACT}, v14
        s_mul_i32 s72, {sW}, {ACT_STRIDE}
        s_add_u32 s72, s72, {L_ACT}
        v_add_u32 v15, s72, {vVO}
        v_lshlrev_b32 v3, 6, v3
        v_and_b32 v5, 1, v5
        v_lshl_add_u32 v3, v5, 3, v3
        v_bfe_u32 v4, v0, 2, 2
        v_lshl_add_u32 v3, v4, 1, v3
        s_lshl_b32 s72, {sW}, 4
        s_add_u32 s72, s72, {L_HH}
        v_add_u32 v9, s72, v3
        s_waitcnt vmcnt(0)
        """)
        self.poll_check(loads, range(36, 48), "v3", "pmod")
        self.unpack8(32, 48)
        self.unpack8(36, 56)
        self.unpack8(40, 64)
        self.unpack8(44, 72)
        for r in range(8): a(f"v_add_f32 v{72+r}, 1.0, v{72+r}")
        a(f"s_lshl_b32 s76, {sW}, 10\n s_add_u32 s76, s76, {MB_X}")
        xl = []
        for k in range(8):
            xl.append(f"s_add_u32 s77, s76, {4096*k}")
            xl.append(f"buffer_load_dwordx4 v[{176+4*k}:{179+4*k}], {vVO}, {SRD_WS}, s77 offen sc1")
        for l in xl: a(l)
        a("s_waitcnt vmcnt(0)")
        self.poll_check(xl, range(176, 208), "v3", "px")
        self.stamp(9)
        for r in range(8): a(f"v_mov_b32 v{80+r}, 0")
        for k in range(8):
            for r in range(4):
                a(f"v_dot2c_f32_bf16 v{80+2*r}, {sDLO}, v{176+4*k+r}")
                a(f"v_dot2c_f32_bf16 v{81+2*r}, {sDHI}, v{176+4*k+r}")
        for r in range(8): a(f"v_fmac_f32 v{48+r}, v{56+r}, v{80+r}")
        self.layernorm8(48, 80, 81)
        for r in range(8): a(f"v_fma_f32 v{48+r}, v{48+r}, v{72+r}, v{64+r}")
        for r in range(4): a(f"v_cvt_pk_bf16_f32 v{32+r}, v{48+2*r}, v{49+2*r}")
        a("ds_write_b128 v15, v[32:35]")
        a("L_fd_bar1:\n s_waitcnt lgkmcnt(0)\n s_barrier")
        a(f"s_cmp_ge_u32 {sW}, 4\n s_cbranch_scc1 L_fd_bar2")
        for t in range(16): a(f"ds_read_b128 v[{176+4*t}:{179+4*t}], v14 offset:{64*t}")
        for t in range(16):
            a(f"s_waitcnt lgkmcnt({min(15, 15-t)})")
            c = "0" if t == 0 else "v[32:35]"
            a(f"v_mfma_f32_16x16x32_bf16 v[32:35], {vr(112+4*t,4)}, {vr(176+4*t,4)}, {c}")
        k1 = -2.0*math.sqrt(2.0/math.pi)*LOG2E
        a(f"""
        v_mov_b32 v36, v32
        v_mov_b32_dpp v36, v33 quad_perm:[0,1,2,3] row_mask:0xf bank_mask:0x2
        v_mov_b32_dpp v36, v34 quad_perm:[0,1,2,3] row_mask:0xf bank_mask:0x4
        v_mov_b32_dpp v36, v35 quad_perm:[0,1,2,3] row_mask:0xf bank_mask:0x8
        v_mov_b32 v37, v36
        v_permlane32_swap_b32 v36, v37
        v_mul_f32 v38, v36, v36
        v_mov_b32 v39, {hex(f2u(k1))}
        v_fmac_f32 v39, {hex(f2u(k1*0.044715))}, v38
        v_mul_f32 v39, v39, v36
        v_exp_f32 v39, v39
        v_mul_f32 v37, v37, v36
        v_add_f32 v39, 1.0, v39
        v_rcp_f32 v39, v39
        v_mul_f32 v37, v37, v39
        v_cvt_pk_bf16_f32 v37, v37, v37
        ds_write_b16 v9, v37
        L_fd_bar2:
        s_waitcnt lgkmcnt(0)
        s_barrier
        ds_read_b128 v[32:35], v12
        s_waitcnt lgkmcnt(0)
        """)
        for ct in range(4):
            a(f"v_mfma_f32_16x16x32_bf16 {vr(48+4*ct,4)}, {vr(96+4*ct,4)}, v[32:35], 0")
        for ct in range(1, 4):
            for r in range(4):
                a(f"v_cndmask_b32 v{48+r}, v{48+r}, v{48+4*ct+r}, s[{88+2*ct}:{89+2*ct}]")
        for r in range(4): a(f"v_min_u32 v{48+r}, -2, v{48+r}")
        a(f"buffer_store_dwordx4 v[48:51], v13, {SRD_WS}, {sRB} offen sc1")
        self.stamp(10)
        a("s_branch L_fin")

    def role_r(self):
        a = self.a
        a("L_role_r:")
        a(f"""
        s_cmp_ge_u32 {sW}, 4
        s_cbranch_scc1 L_fin
        s_lshl_b32 s76, {sX}, 3
        s_add_u32 s76, s76, {sRI}            ; rho
        s_lshl_b32 s76, s76, 3
        v_and_b32 v3, 1, v0
        v_lshlrev_b32 v3, 2, v3
        v_lshrrev_b32 v4, 5, v0
        v_lshl_add_u32 v3, v4, 1, v3
        v_add_u32 v3, s76, v3
        v_lshlrev_b32 v5, 1, v3
        v_bfe_u32 v4, v0, 4, 1
        v_lshl_add_u32 v9, v4, 1, v5
        v_lshlrev_b32 v10, 4, v4
        v_bfe_u32 v4, v0, 1, 3
        v_lshl_add_u32 v6, v4, 12, v5
        v_lshrrev_b32 v4, 1, v0
        v_lshlrev_b32 v7, 13, v4
        v_and_b32 v4, 1, v0
        v_lshl_add_u32 v7, v4, 4, v7
        v_add_u32 v8, {32*8192}, v7
        v_mov_b32 v4, 0x7ff00000
        v_cmp_gt_u32 vcc, 48, v0
        v_cndmask_b32 v8, v4, v8, vcc
        """)
        self.srd(SRD_T, 4, 4096)
        a(f"""
        s_lshl_b32 s72, {sW}, 10
        buffer_load_dword v32, v5, {SRD_T}, s72 offen
        s_mul_i32 s73, {sW}, 6144
        s_add_u32 s73, s73, {MB_MOD + 2048}
        s_add_u32 s77, s72, {MB_X}
        s_lshl_b32 s78, {sW}, 11
        s_lshl_b32 s79, s76, 2
        s_add_u32 s78, s78, s79
        s_add_u32 s78, s78, {MB_D}
        """)
        loads = [f"buffer_load_dword v33, v5, {SRD_WS}, s73 offen sc1",
                 f"buffer_load_dword v34, v5, {SRD_WS}, s73 offen offset:3072 sc1",
                 f"buffer_load_dword v35, v6, {SRD_WS}, s77 offen sc1"]
        for l in loads: a(l)
        self.srd(SRD_T, 26, 4096)
        a("s_waitcnt vmcnt(0)")
        self.poll_check(loads, [33, 34, 35], "v3", "pr1")
        self.stamp(9)
        dl = [f"buffer_load_dwordx4 v[40:43], v7, {SRD_WS}, s78 offen sc1",
              f"buffer_load_dwordx4 v[44:47], v8, {SRD_WS}, s78 offen sc1"]
        for l in dl: a(l)
        for r in range(32, 36): a(f"v_lshrrev_b32 v{r}, v10, v{r}")
        for r in range(32, 36): a(f"v_lshlrev_b32 v{r}, 16, v{r}")
        a(f"""
        v_add_f32_dpp v35, v35, v35 quad_perm:[2,3,0,1] {FULL}
        v_add_f32_dpp v35, v35, v35 row_ror:4 {FULL}
        v_add_f32_dpp v35, v35, v35 row_ror:8 {FULL}
        v_fmac_f32 v32, v33, v35
        s_waitcnt vmcnt(0)
        """)
        self.poll_check(dl, range(40, 48), "v3", "pr2")
        self.stamp(10)
        for r in range(4): a(f"v_add_f32 v{40+r}, v{40+r}, v{44+r}")
        a(f"""
        v_permlane32_swap_b32 v40, v42
        v_permlane32_swap_b32 v41, v43
        v_add_f32 v40, v40, v42
        v_add_f32 v41, v41, v43
        v_permlane16_swap_b32 v40, v41
        v_add_f32 v40, v40, v41
        v_add_f32_dpp v40, v40, v40 quad_perm:[2,3,0,1] {FULL}
        v_add_f32_dpp v40, v40, v40 row_ror:4 {FULL}
        v_add_f32_dpp v40, v40, v40 row_ror:8 {FULL}
        v_fmac_f32 v32, v34, v40
        v_cvt_pk_bf16_f32 v32, v32, v32
        s_mov_b32 exec_lo, 0x00030003
        s_mov_b32 exec_hi, 0x00030003
        buffer_store_short v32, v9, {SRD_T}, s72 offen
        s_mov_b64 exec, -1
        """)
        self.stamp(11)
        a("s_branch L_fin")

    def build(self):
        a = self.a
        self.prologue()
        self.phase_a_early()
        self.k_stream()
        self.attention()
        a(f"""
        s_cmp_eq_u32 {sROLE}, {R_O}
        s_cbranch_scc1 L_role_o
        s_cmp_eq_u32 {sROLE}, {R_FD}
        s_cbranch_scc1 L_role_fd
        s_cmp_eq_u32 {sROLE}, {R_Q}
        s_cbranch_scc1 L_role_r
        s_branch L_fin
        """)
        self.role_o()
        self.role_fd()
        self.role_r()
        for c in self.cold: a(c)
        a("L_fin:")
        self.stamp_flush()
        a("L_exit:\n s_endpgm\n L_code_end:")
        text, n = fix_hazards(a.text())
        return text


HEADER = """; Fused decode layer (adaLN conditioning, GQA attention over the cached K/V, gated GELU MLP), one launch.
"""
def generate(**kw):
    g = Gen(**kw)
    body = g.build()
    return wrap(body, 256, 512, L_END, vgpr=256, accum=256, sgpr=102, header=HEADER)

if __name__ == "__main__":
    import json
    out = sys.argv[1]
    kw = json.loads(sys.argv[2]) if len(sys.argv) > 2 else {}
    open(out, "w").write(generate(**kw))
```
